```python
import torch

def _softmax(x, axis=-1):
    return torch.softmax(x, dim=axis)
def _gelu(x):
    return torch.nn.functional.gelu(x, approximate="tanh")
def _silu(x):
    return torch.nn.functional.silu(x)
def _sigmoid(x):
    return torch.sigmoid(x)
def _layernorm(x, axis=-1, eps=1e-5):
    m = x.mean(dim=axis, keepdim=True)
    v = x.var(dim=axis, keepdim=True, unbiased=False)
    return (x - m) / torch.sqrt(v + eps)
def _scatter_add(tgt, idx, src, axis=0):
    return tgt.clone().index_add_(axis, idx, src)
def _segment_sum(src, seg, n):
    out = torch.zeros((n,) + src.shape[1:], dtype=src.dtype)
    return out.index_add_(0, seg, src)
def _pad(x, pw):
    flat = tuple(v for pair in reversed(pw) for v in pair)
    return torch.nn.functional.pad(x, flat)

kernel_name = 'concat_heads__mha_block_cached__gqa_block_cached__near_ridge'

def setup_inputs():

    _w = (lambda a: (lambda t: t.to(torch.bfloat16) if t.is_floating_point() else t)(torch.as_tensor(a)))
    def _A_setup():
        B, Sq, D = 16, 192, 512
        H, Sk, Dh = 32, 512, 128
        return {
            "x": _w((lambda *s: torch.randn(*s, dtype=torch.bfloat16) * 0.8)(B, Sq, D)),
            "k_cache": _w((lambda *s: torch.randn(*s, dtype=torch.bfloat16) * 0.8)(B, H, Sk, Dh)),
            "v_cache": _w((lambda *s: torch.randn(*s, dtype=torch.bfloat16) * 0.05)(B, H, Sk, Dh)),
            "wq": _w((lambda *s: torch.randn(*s, dtype=torch.bfloat16) * 0.8)(D, H * Dh) * (D ** -0.5)),
            "wo": _w((lambda *s: torch.randn(*s, dtype=torch.bfloat16) * 0.05)(H * Dh, D) * ((H * Dh) ** -0.5)),
        }
    _A_in = _A_setup()

    def _B_setup():
        B, Sq, D = 16, 192, 512
        Hq, Hkv, Sk, Dh = 32, 32, 512, 128
        assert Hq % Hkv == 0, (Hq, Hkv)
        return {
            "x": _w((lambda *s: torch.randn(*s, dtype=torch.bfloat16) * 0.8)(B, Sq, D)),
            "k_cache": _w((lambda *s: torch.randn(*s, dtype=torch.bfloat16) * 0.8)(B, Hkv, Sk, Dh)),
            "v_cache": _w((lambda *s: torch.randn(*s, dtype=torch.bfloat16) * 0.05)(B, Hkv, Sk, Dh)),
            "wq": _w((lambda *s: torch.randn(*s, dtype=torch.bfloat16) * 0.8)(D, Hq * Dh) * (D ** -0.5)),
            "wo": _w((lambda *s: torch.randn(*s, dtype=torch.bfloat16) * 0.05)(Hq * Dh, D) * ((Hq * Dh) ** -0.5)),
        }
    _B_in = _B_setup()

    return {
        "A_x": _A_in["x"],
        "A_k_cache": _A_in["k_cache"],
        "A_v_cache": _A_in["v_cache"],
        "A_wq": _A_in["wq"],
        "A_wo": _A_in["wo"],
        "B_x": _B_in["x"],
        "B_k_cache": _B_in["k_cache"],
        "B_v_cache": _B_in["v_cache"],
        "B_wq": _B_in["wq"],
        "B_wo": _B_in["wo"],
    }

def reference(A_x, A_k_cache, A_v_cache, A_wq, A_wo, B_x, B_k_cache, B_v_cache, B_wq, B_wo):
    def _A_ref(x, k_cache, v_cache, wq, wo):
        B, Sq, D = x.shape
        H, Dh = 32, 128
        q = (lambda x, *d: x.permute(*d))((x @ wq).reshape(B, Sq, H, Dh), 0, 2, 1, 3)
        scores = torch.einsum("bhqd,bhkd->bhqk", q, k_cache) * (Dh ** -0.5)
        p = _softmax(scores, axis=-1)
        o = torch.einsum("bhqk,bhkd->bhqd", p, v_cache)
        return (lambda x, *d: x.permute(*d))(o, 0, 2, 1, 3).reshape(B, Sq, H * Dh) @ wo

    def _B_ref(x, k_cache, v_cache, wq, wo):
        B, Sq, D = x.shape
        Hq, Dh = 32, 128
        Hkv = k_cache.shape[1]
        rep = Hq // Hkv
        q = (lambda x, *d: x.permute(*d))((x @ wq).reshape(B, Sq, Hq, Dh), 0, 2, 1, 3)
        k = (lambda x, n, axis: torch.repeat_interleave(x, n, dim=axis))(k_cache, rep, axis=1)
        v = (lambda x, n, axis: torch.repeat_interleave(x, n, dim=axis))(v_cache, rep, axis=1)
        scores = torch.einsum("bhqd,bhkd->bhqk", q, k) * (Dh ** -0.5)
        p = _softmax(scores, axis=-1)
        o = torch.einsum("bhqk,bhkd->bhqd", p, v)
        return (lambda x, *d: x.permute(*d))(o, 0, 2, 1, 3).reshape(B, Sq, Hq * Dh) @ wo

    a = _A_ref(A_x, A_k_cache, A_v_cache, A_wq, A_wo)
    b = _B_ref(B_x, B_k_cache, B_v_cache, B_wq, B_wo)
    return torch.concatenate([a, b], axis=-1)
```

```python
import re

def R(kind, n, cnt=1):
    return [(kind, n + i) for i in range(cnt)]
def vr(n, cnt=1):
    return f"v{n}" if cnt == 1 else f"v[{n}:{n+cnt-1}]"
def ar(n, cnt=1):
    return f"a{n}" if cnt == 1 else f"a[{n}:{n+cnt-1}]"
def sr(n, cnt=1):
    return f"s{n}" if cnt == 1 else f"s[{n}:{n+cnt-1}]"

class Reg:
    __slots__ = ("k", "n", "c")
    def __init__(s, k, n, c=1): s.k, s.n, s.c = k, n, c
    def __str__(s): return f"{s.k}{s.n}" if s.c == 1 else f"{s.k}[{s.n}:{s.n+s.c-1}]"
    def regs(s): return [(s.k, s.n + i) for i in range(s.c)]
    def sub(s, off, c=1):
        assert 0 <= off and off + c <= s.c, (str(s), off, c)
        return Reg(s.k, s.n + off, c)
def V(n, c=1): return Reg("v", n, c)
def A(n, c=1): return Reg("a", n, c)
def S(n, c=1): return Reg("s", n, c)
M0 = ("m0", 0); VCC = ("vcc", 0); SCC = ("scc", 0); EXEC = ("exec", 0)

def regs_of(x):
    if x is None: return []
    if isinstance(x, Reg): return x.regs()
    if isinstance(x, tuple): return [x]
    if isinstance(x, (list,)):
        o = []
        for y in x: o += regs_of(y)
        return o
    return []

class Ins:
    __slots__ = ("t", "k", "r", "w", "tag", "needs", "c", "lds_r", "lds_w", "note", "nwait")
    def __init__(s, t, k, r=(), w=(), tag=None, needs=None, c=None):
        s.t, s.k = t, k
        s.r = regs_of(list(r)); s.w = regs_of(list(w))
        s.tag = tag; s.needs = needs; s.c = c
        s.note = None
    def units(s):
        return {"x": 2}.get(s.k, 1)
    def is_valu(s): return s.k in ("v", "x", "perm")
    def __repr__(s): return s.t

def fmt(x): return str(x)
def mfma32(d, a, b, c):
    cr = regs_of(c) if isinstance(c, Reg) else []
    return Ins(f"v_mfma_f32_32x32x16_bf16 {d}, {a}, {b}, {c}", "m32", r=[a, b] + ([c] if cr else []), w=[d], c=cr)
def mfma16(d, a, b, c):
    cr = regs_of(c) if isinstance(c, Reg) else []
    return Ins(f"v_mfma_f32_16x16x32_bf16 {d}, {a}, {b}, {c}", "m16", r=[a, b] + ([c] if cr else []), w=[d], c=cr)
def valu(op, d, *src, extra_w=(), extra_r=(), mod=""):
    k = "x" if op in ("v_exp_f32", "v_rcp_f32", "v_log_f32", "v_rsq_f32", "v_sqrt_f32") else "v"
    t = f"{op} {d}, " + ", ".join(fmt(x) for x in src) + (" " + mod if mod else "")
    r = [x for x in src if isinstance(x, Reg)] + list(extra_r)
    if op in ("v_fmac_f32",): r.append(d)
    return Ins(t, k, r=r, w=[d] + list(extra_w))
def permswap(op, d, s):
    return Ins(f"{op} {d}, {s}", "perm", r=[d, s], w=[d, s])
def salu(op, d, *src, scc=True):
    t = f"{op} {d}, " + ", ".join(fmt(x) for x in src)
    dd = M0 if d == "m0" else d
    r = [x for x in src if isinstance(x, Reg)] + ([M0] if "m0" in src else [])
    if op in ("s_addc_u32", "s_subb_u32", "s_cselect_b32", "s_cselect_b64"): r.append(SCC)
    w = [dd]
    if op not in ("s_mov_b32", "s_mov_b64", "s_mul_i32", "s_mul_hi_u32", "s_cselect_b32", "s_cselect_b64", "s_movk_i32"): w.append(SCC)
    return Ins(t, "s", r=r, w=w)
def scmp(op, a, b):
    return Ins(f"{op} {a}, {b}", "s", r=[x for x in (a, b) if isinstance(x, Reg)], w=[SCC])
def ds_read(op, d, addr, off=0):
    assert 0 <= off < 65536, off
    return Ins(f"{op} {d}, {addr}" + (f" offset:{off}" if off else ""), "ds", r=[addr], w=[d])
def ds_write(op, addr, data, off=0):
    assert 0 <= off < 65536, off
    return Ins(f"{op} {addr}, {data}" + (f" offset:{off}" if off else ""), "dsw", r=[addr, data])
def dma(voff, srd, soff, off=0, flags="", tag=None):
    assert 0 <= off < 4096
    so = fmt(soff)
    return Ins(f"buffer_load_dwordx4 {voff}, {srd}, {so} offen" + (f" offset:{off}" if off else "") + (f" {flags}" if flags else "") + " lds",
               "dma", r=[voff, srd, soff if isinstance(soff, Reg) else None, M0], tag=tag)
def vload(op, d, voff, srd, soff, off=0, flags="", tag=None):
    assert 0 <= off < 4096
    return Ins(f"{op} {d}, {voff}, {srd}, {fmt(soff)} offen" + (f" offset:{off}" if off else "") + (f" {flags}" if flags else ""),
               "vl", r=[voff, srd, soff if isinstance(soff, Reg) else None], w=[d], tag=tag)
def vstore(op, data, voff, srd, soff, off=0, flags="", tag=None):
    assert 0 <= off < 4096
    return Ins(f"{op} {data}, {voff}, {srd}, {fmt(soff)} offen" + (f" offset:{off}" if off else "") + (f" {flags}" if flags else ""),
               "vs", r=[data, voff, srd, soff if isinstance(soff, Reg) else None], tag=tag)
def sync(needs=(), lgkm0=True, barrier=True, note=""):
    i = Ins("SYNC " + note, "sync"); i.needs = list(needs); i.c = (lgkm0, barrier); return i
def raw(t, k="s", r=(), w=()):
    return Ins(t, k, r=r, w=w)
def nop(n): return Ins(f"s_nop {n}", "nop")
def label(name): return Ins(f"{name}:", "label")

class Sched:
    def __init__(s):
        s.bb = []; s.gap = []
    def add_bb(s, ins):
        s.bb.append(ins); s.gap.append([]); return len(s.bb) - 1
    def n(s): return len(s.bb)
    def load(s, i):
        g = s.gap[i]
        nv = sum(1 for x in g if x.is_valu()); un = sum(x.units() for x in g if x.is_valu()); nt = len(g)
        return nv, un, nt
    def fits(s, i, ins):
        nv, un, nt = s.load(i)
        k = s.bb[i].k
        if ins.is_valu():
            nv += 1; un += ins.units()
        nt += 1
        if k == "m32": return nv <= CAP32[0] and un <= CAP32[1] and nt <= CAP32[2]
        if k == "m16": return nv <= CAP16[0] and un <= CAP16[1] and nt <= CAP16[2]
        return True
    def put(s, i, ins):
        if isinstance(ins, list):
            for x in ins: s.put(i, x)
            return i
        s.gap[i].append(ins); return i
    def place(s, ins, lo, hi, step=0):
        hi = min(hi, len(s.bb) - 1); lo = min(lo, hi)
        grp = ins if isinstance(ins, list) else [ins]
        for i in range(lo, hi + 1):
            ok = True; n0 = len(s.gap[i])
            for x in grp:
                if not s.fits(i, x): ok = False; break
                s.gap[i].append(x)
            if ok: return i
            del s.gap[i][n0:]
        best = min(range(lo, hi + 1), key=lambda i: (s.load(i)[1] * 4 + s.load(i)[2], -i))
        best = hi
        s.gap[best] += grp
        return best
    def chain(s, inss, lo, hi):
        n = len(inss); cur = lo
        for j, x in enumerate(inss):
            tgt = max(cur, lo + (j * (hi - lo + 1)) // max(n, 1))
            cur = s.place(x, tgt, hi)
        return cur
    def linear(s):
        out = []
        for b, g in zip(s.bb, s.gap):
            out.append(b)
            first = [x for x in g if x.k in ("dma", "vl", "vs") or getattr(x, "note", None) == "first"]
            out += order_gap(g)
        return out
CAP32 = [5, 6, 6]
CAP16 = [1, 2, 2]

def indep(x, y):
    xr, xw, yr, yw = set(x.r), set(x.w), set(y.r), set(y.w)
    return not ((xr | xw) & yw) and not (xw & yr)
def order_gap(g):
    res = []; seg = []
    def flush():
        a = []; b = []
        for x in seg:
            want = (x.note == "pre") or (x.k in ("dma", "vl", "vs") and x.note != "nofirst")
            if want and all(indep(x, y) for y in b): a.append(x)
            else: b.append(x)
        res.extend(a + b); seg.clear()
    for x in g:
        if x.k in ("sync", "label", "br"):
            flush(); res.append(x)
        else:
            seg.append(x)
    flush()
    return res

def insert_waits(prog, verbose=False):
    out = []
    lg = []
    vm = []
    def wait(vmn=None, lgn=None):
        parts = []
        if vmn is not None: parts.append(f"vmcnt({min(vmn,62)})")
        if lgn is not None: parts.append(f"lgkmcnt({min(lgn,14)})")
        w = Ins("s_waitcnt " + " ".join(parts), "wait"); out.append(w)
    for ins in prog:
        if ins.k == "sync":
            lgkm0, bar = ins.c
            vmn = None
            idx = -1
            for j, (d, tag) in enumerate(vm):
                if tag is not None and tag in ins.needs: idx = j
            if idx >= 0:
                vmn = len(vm) - 1 - idx
                del vm[:idx + 1]
            lgn = None
            if lgkm0 and lg:
                lgn = 0; lg.clear()
            if vmn is not None or lgn is not None: wait(vmn, lgn)
            if bar: out.append(Ins("s_barrier", "bar"))
            continue
        if ins.k in ("label", "br"):
            out.append(ins); continue
        touched = set(ins.r) | set(ins.w)
        idx = -1
        for j, d in enumerate(lg):
            if d & touched: idx = j
        lgn = None; vmn = None
        if idx >= 0:
            lgn = len(lg) - 1 - idx; del lg[:idx + 1]
        idx = -1
        for j, (d, tag) in enumerate(vm):
            if d & touched: idx = j
        if idx >= 0:
            vmn = len(vm) - 1 - idx; del vm[:idx + 1]
        if lgn is not None or vmn is not None: wait(vmn, lgn)
        out.append(ins)
        if ins.k == "ds": lg.append(set(ins.w))
        elif ins.k == "dsw": lg.append(set())
        elif ins.k == "dma": vm.append((set(), ins.tag))
        elif ins.k == "vl": vm.append((set(ins.w), ins.tag))
        elif ins.k == "vs": vm.append((set(), ins.tag))
    return out

def states(ins):
    if ins.k == "nop":
        return int(ins.t.split()[1]) + 1
    if ins.k in ("label",): return 0
    return 1

def fix_hazards(prog, insert=True, report=None):
    out = []
    pos = 0
    last_valu_w = {}
    last_trans_w = {}
    last_mfma_w = {}
    last_mfma_c = {}
    last_m0 = -99
    last_vsgpr_w = {}
    last_store = {}
    nops = 0
    for ins in prog:
        need = 0
        def req(p, d):
            nonlocal need
            need = max(need, d - (pos - p - 1))
        k = ins.k
        if k in ("m32", "m16"):
            cset = set(ins.c or [])
            dt = tuple(ins.w)
            for r in ins.r:
                if r in last_valu_w: req(last_valu_w[r], 2)
                if r in last_mfma_w:
                    p, passes, pd = last_mfma_w[r]
                    if r in cset:
                        same = (tuple(ins.c) == pd) and passes == (8 if k == "m32" else 4)
                        if not same: req(p, 10 if passes == 8 else 6)
                    ab = [x for x in ins.r if x not in cset]
                    if r in ab: req(p, 12 if passes == 8 else 8)
            for r in ins.w:
                if r in last_mfma_w and r not in cset:
                    p, passes, pd = last_mfma_w[r]
                    req(p, 10 if passes == 8 else 6)
        else:
            isv = ins.is_valu()
            for r in list(ins.r) + list(ins.w):
                if r in last_mfma_w and (isv or k in ("ds", "dsw", "dma", "vl", "vs")):
                    p, passes, pd = last_mfma_w[r]
                    req(p, 12 if passes == 8 else 8)
            if isv:
                for r in ins.w:
                    if r in last_mfma_c:
                        p, passes = last_mfma_c[r]; req(p, 7 if passes == 8 else 3)
                    if r in last_store: req(last_store[r], 2)
                if k != "x":
                    for r in ins.r:
                        if r in last_trans_w: req(last_trans_w[r], 1)
                if k == "perm":
                    for r in ins.r:
                        if r in last_valu_w: req(last_valu_w[r], 2)
                for r in ins.r:
                    if r in last_vsgpr_w: req(last_vsgpr_w[r], 2)
                if ins.t.startswith("v_readfirstlane") or ins.t.startswith("v_readlane"):
                    for r in ins.r:
                        if r in last_valu_w: req(last_valu_w[r], 1)
            if k in ("ds", "vl"):
                for r in ins.w:
                    if r in last_store: req(last_store[r], 1)
            if k in ("dma",):
                req(last_m0, 1)
            if k in ("dma", "vl", "vs"):
                for r in ins.r:
                    if r in last_vsgpr_w: req(last_vsgpr_w[r], 5)
            if k == "s":
                for r in ins.r:
                    if r in last_vsgpr_w: req(last_vsgpr_w[r], 1)
        if need > 0:
            if report is not None: report.append((need, ins.t))
            if insert:
                n = need
                while n > 0:
                    m = min(n, 16); out.append(nop(m - 1)); pos += m; n -= m; nops += 1
        out.append(ins)
        if k in ("m32", "m16"):
            passes = 8 if k == "m32" else 4
            for r in ins.w:
                last_mfma_w[r] = (pos, passes, tuple(ins.w)); last_valu_w.pop(r, None)
            for r in (ins.c or []): last_mfma_c[r] = (pos, passes)
        elif ins.is_valu():
            for r in ins.w:
                if r[0] in ("v", "a"):
                    last_valu_w[r] = pos; last_mfma_w.pop(r, None)
                    if k == "x": last_trans_w[r] = pos
                    else: last_trans_w.pop(r, None)
                elif r[0] in ("s", "vcc"):
                    last_vsgpr_w[r] = pos
        elif k == "s":
            for r in ins.w:
                if r == M0: last_m0 = pos
                last_vsgpr_w.pop(r, None)
        elif k in ("ds", "vl"):
            for r in ins.w:
                last_mfma_w.pop(r, None); last_valu_w.pop(r, None); last_trans_w.pop(r, None)
        if k == "vs" and ("x4" in ins.t or "x3" in ins.t):
            for r in ins.r:
                if r[0] in ("v", "a"): last_store[r] = pos
        pos += states(ins)
    return out

def emit(prog):
    L = []
    for i in prog:
        L.append(i.t if i.k == "label" else "    " + i.t)
    return "\n".join(L)

def stamp(i):
    return Ins(f"s_memrealtime s[{80+2*i}:{81+2*i}]", "s", w=[S(80+2*i, 2)])
def stamp_dump(n, sWG, sWave, ws_off=280000000):
    L = []
    L.append(raw("s_load_dwordx2 s[76:77], s[0:1], 96", "s"))
    L.append(raw("s_waitcnt lgkmcnt(0)", "wait"))
    L.append(raw(f"s_add_u32 s76, s76, {ws_off}")); L.append(raw("s_addc_u32 s77, s77, 0"))
    L.append(raw("s_mov_b32 s78, 65536")); L.append(raw("s_mov_b32 s79, 0x20000"))
    L.append(raw(f"s_lshl_b32 s74, {sWG}, 2")); L.append(raw(f"s_add_u32 s74, s74, {sWave}")); L.append(raw("s_lshl_b32 s74, s74, 6"))
    L.append(raw("v_mov_b32 v2, s74", "v"))
    L.append(raw("s_mov_b64 exec, 1"))
    for i in range(n):
        L.append(raw(f"v_mov_b32 v3, s{80+2*i}", "v"))
        L.append(raw("s_nop 1", "nop"))
        L.append(raw(f"buffer_store_dword v3, v2, s[76:79], 0 offen offset:{4*i}", "raw"))
        L.append(raw("s_nop 1", "nop"))
    return L
```

```python
import sys
sys.path.insert(0, "gen")
HEADER = """; Fused MHA/GQA block pair: (x@wq -> attention) -> ws ; (O@wo) -> out.  Hand-written generator output (gen/*.py).
"""
def build(parts, launches):
    s = HEADER
    for (k, g, b, lds) in launches:
        s += f"; @launch kernel={k} grid=({g},1,1) block=({b},1,1) lds={lds}\n"
    s += '.amdgcn_target "amdgcn-amd-amdhsa--gfx950"\n.text\n'
    for t, kd in parts: s += t
    s += '.section .rodata,"a"\n'
    for t, kd in parts: s += ".p2align 6\n" + kd
    return s
```

```python
from asmlib import *
import struct, math
def f2u(x): return struct.unpack("<I", struct.pack("<f", x))[0]
QSCALE = math.log2(math.e) / math.sqrt(128.0)

KPOS = lambda p: p * 16384
VPOS = lambda p: 65536 + p * 16384
QSLOT = {"X": 32768, "Y": 98304, "Z": 131072}
QORD = ["Z", "X", "Y"]
def qslot(s): return QSLOT[QORD[s % 3]]
WQ_SZ = 16640
LDS_BYTES = 163840

class K1:
    def __init__(s, name="attn_kernel", kv_flags="nt", o_flags="", exp=(), nrounds=2):
        s.name = name; s.kv_flags = kv_flags; s.o_flags = o_flags; s.exp = exp; s.nrounds = nrounds
        s.sWG = S(2); s.sW = S(3)
        s.sPtr = S(4, 8)
        s.sWS = S(12, 2)
        s.srdX = S(16, 4); s.srdWq = S(20, 4); s.srdK = S(24, 4); s.srdV = S(28, 4); s.srdO = S(32, 4)
        s.srdKn = S(36, 4); s.srdVn = S(40, 4); s.srdWqn = S(44, 4); s.srdOn = S(48, 4)
        s.sXw = S(52); s.sWw = S(53); s.sKw = S(54); s.sM3072 = S(55); s.sM4160 = S(56); s.sM4096 = S(57)
        s.sT = [S(58 + i) for i in range(8)]
        s.sScale = S(66); s.sB = S(67); s.sHP = S(68); s.sBR = S(69); s.sFlag = S(70)
        s.sQ = [S(71), S(72)]
        s.vLane = V(1)
        s.vX = [V(2), V(3), V(4)]
        s.vW = V(5)
        s.vKd = [V(6 + u) for u in range(4)]
        s.vVd = V(10)
        s.vWr = {k: [V(11 + 2 * i), V(12 + 2 * i)] for i, k in enumerate(QORD)}
        s.vXr = {k: V(17 + i) for i, k in enumerate(QORD)}
        s.vKr = [V(20 + t) for t in range(8)]
        s.vVr = [V(28 + d) for d in range(4)]
        s.vL = [V(32 + q) for q in range(3)]
        s.vRL = [V(35 + q) for q in range(3)]
        s.vOst = V(38)
        s.vTmp = [V(39), V(40)]
        s.Bv = [V(52 + 4 * q, 4) for q in range(3)]
        s.drainT = [V(41, 1)]
        s.vDum = V(51)

    def qacc(s, q, t): return V(64 + 64 * (q >> 1) + 8 * t + 4 * (q & 1), 4)
    def qfrag(s, Q, t): return V(64 + 64 * Q + 4 * t, 4)
    def Sreg(s, Q): return V(64 + 64 * Q + 32, 16)
    def oacc(s, Q, dt): return A(64 * Q + 16 * dt, 16)
    def Kf(s, t): return A(192 + 4 * t, 4)
    def Vf(s, u, dt): return A(224 + 4 * (4 * u + dt), 4)
    def Af(s, t): return A(192 + 4 * t, 4)
    def Bf(s, q): return s.Bv[q] if q < 3 else A(224 + 4 * (q - 3), 4)

    def prologue(s):
        P = []; a = P.append; T = s.sT
        a(scmp("s_cmp_ge_u32", s.sWG, 256)); a(raw(f"s_cbranch_scc1 L_{s.name}_end", "br"))
        if "stamp" in s.exp: a(stamp(0))
        a(salu("s_and_b32", T[0], s.sWG, 7)); a(salu("s_lshr_b32", T[1], s.sWG, 3))
        a(salu("s_lshr_b32", s.sBR, T[0], 2))
        a(salu("s_and_b32", T[2], T[0], 3)); a(salu("s_lshl_b32", T[2], T[2], 2)); a(salu("s_lshr_b32", T[3], T[1], 3))
        a(salu("s_add_u32", s.sB, T[2], T[3]))
        a(salu("s_and_b32", s.sHP, T[1], 7))
        a(salu("s_mul_i32", T[4], s.sBR, 40))
        a(salu("s_add_u32", T[6], S(0), T[4])); a(salu("s_addc_u32", T[7], S(1), 0))
        a(raw(f"s_load_dwordx8 s[4:11], s[{T[6].n}:{T[7].n}], 0", "s", r=[T[6], T[7]], w=[s.sPtr]))
        a(raw("s_load_dwordx2 s[12:13], s[0:1], 96", "s", r=[S(0, 2)], w=[s.sWS]))
        t0, t1, t2, t3 = V(41), V(42), V(43), V(44)
        L = s.vLane
        a(valu("v_lshrrev_b32", t0, 6, V(0))); a(valu("v_and_b32", L, 63, V(0)))
        a(valu("v_readfirstlane_b32", s.sW, t0))
        a(valu("v_lshrrev_b32", t0, 2, L)); a(valu("v_lshlrev_b32", t0, 10, t0))
        a(valu("v_lshrrev_b32", t1, 5, L)); a(valu("v_lshlrev_b32", t2, 1, t1)); a(valu("v_and_b32", t3, 3, L))
        a(valu("v_xor_b32", t3, t3, t2)); a(valu("v_lshlrev_b32", t3, 4, t3)); a(valu("v_add_u32", s.vX[0], t0, t3))
        a(valu("v_add_u32", s.vX[1], 15360, s.vX[0])); a(valu("v_add_u32", s.vX[2], 30720, s.vX[0]))
        a(valu("v_and_b32", t3, 31, L)); a(valu("v_xor_b32", t3, t3, t2)); a(valu("v_lshlrev_b32", t3, 4, t3))
        a(valu("v_lshlrev_b32", t0, 13, t1)); a(valu("v_add_u32", s.vW, t0, t3))
        a(valu("v_lshrrev_b32", t0, 4, L)); a(valu("v_and_b32", t1, 15, L))
        a(valu("v_lshlrev_b32", t2, 8, t0)); a(valu("v_xor_b32", t3, t1, t0))
        for u in range(4):
            a(valu("v_xor_b32", s.vKd[u], 4 * u, t3)); a(valu("v_lshlrev_b32", s.vKd[u], 4, s.vKd[u])); a(valu("v_add_u32", s.vKd[u], s.vKd[u], t2))
        a(valu("v_lshlrev_b32", t3, 2, t0)); a(valu("v_xor_b32", t3, t3, t1)); a(valu("v_lshlrev_b32", t3, 4, t3)); a(valu("v_add_u32", s.vVd, t3, t2))
        a(salu("s_mul_i32", s.sXw, s.sW, 49152))
        a(salu("s_and_b32", T[0], s.sW, 1)); a(salu("s_lshr_b32", T[1], s.sW, 1))
        a(salu("s_lshl_b32", T[2], T[0], 1)); a(salu("s_lshl_b32", T[3], T[1], 3)); a(salu("s_add_u32", T[2], T[2], T[3]))
        a(salu("s_lshl_b32", s.sWw, T[2], 13))
        a(salu("s_lshl_b32", s.sKw, T[0], 12))
        a(salu("s_mul_i32", s.sM3072, s.sW, 3072)); a(salu("s_mul_i32", s.sM4160, s.sW, 4160)); a(salu("s_lshl_b32", s.sM4096, s.sW, 12))
        a(salu("s_mov_b32", s.sScale, f"0x{f2u(QSCALE):08x}"))
        a(salu("s_mov_b32", s.sQ[0], 262144)); a(salu("s_mov_b32", s.sQ[1], 524288)); a(salu("s_mov_b32", s.sFlag, 0))
        g, i_, e, c = V(45), V(46), V(47), V(48)
        a(valu("v_lshrrev_b32", g, 4, L)); a(valu("v_and_b32", i_, 15, L)); a(valu("v_lshrrev_b32", e, 2, i_)); a(valu("v_and_b32", c, 3, i_))
        a(valu("v_lshrrev_b32", t0, 1, e)); a(valu("v_and_b32", t1, 1, g)); a(valu("v_lshlrev_b32", t1, 1, t1)); a(valu("v_add_u32", t0, t0, t1))
        a(valu("v_mul_u32_u24", t0, 4160, t0))
        a(valu("v_lshrrev_b32", t1, 1, g)); a(valu("v_lshlrev_b32", t1, 11, t1)); a(valu("v_add_u32", t0, t0, t1))
        a(valu("v_and_b32", t2, 1, e))
        a(valu("v_lshlrev_b32", t1, 9, t2)); a(valu("v_add_u32", t0, t0, t1))
        a(valu("v_lshlrev_b32", t1, 3, c)); a(valu("v_add_u32", t0, t0, t1))
        a(salu("s_lshl_b32", T[4], T[1], 8)); a(valu("v_add_u32", t0, T[4], t0))
        a(valu("v_lshlrev_b32", t1, 5, t2))
        a(valu("v_add_u32", t3, t0, t1))
        a(valu("v_sub_u32", t0, t0, t1)); a(valu("v_add_u32", t0, 32, t0))
        for k in QORD:
            a(valu("v_add_u32", s.vWr[k][0], QSLOT[k], t3)); a(valu("v_add_u32", s.vWr[k][1], QSLOT[k], t0))
        a(valu("v_lshrrev_b32", t0, 3, i_)); a(valu("v_lshlrev_b32", t0, 1, t0)); a(valu("v_xor_b32", t0, t0, g)); a(valu("v_lshlrev_b32", t0, 4, t0))
        a(valu("v_lshlrev_b32", t1, 6, i_)); a(valu("v_add_u32", t0, t0, t1))
        a(salu("s_mul_i32", T[4], T[0], 96 * 64)); a(valu("v_add_u32", t0, T[4], t0))
        for k in QORD: a(valu("v_add_u32", s.vXr[k], QSLOT[k] + WQ_SZ, t0))
        a(valu("v_lshrrev_b32", t0, 5, L)); a(valu("v_and_b32", t1, 31, L)); a(valu("v_and_b32", t2, 15, L))
        a(valu("v_xor_b32", t0, t0, t2)); a(valu("v_lshlrev_b32", t0, 4, t0))
        a(valu("v_lshlrev_b32", t1, 8, t1))
        a(salu("s_lshl_b32", T[4], T[1], 13)); a(valu("v_add_u32", t1, T[4], t1))
        for t in range(8):
            a(valu("v_xor_b32", s.vKr[t], 32 * t, t0)); a(valu("v_add_u32", s.vKr[t], s.vKr[t], t1))
        a(valu("v_lshrrev_b32", t0, 5, L)); a(valu("v_lshlrev_b32", t0, 2, t0)); a(valu("v_add_u32", t0, t0, e)); a(valu("v_lshlrev_b32", t0, 8, t0))
        a(valu("v_and_b32", t1, 1, g)); a(valu("v_lshlrev_b32", t1, 5, t1)); a(valu("v_add_u32", t0, t0, t1))
        a(valu("v_lshlrev_b32", t1, 3, c)); a(valu("v_add_u32", t0, t0, t1))
        a(salu("s_add_u32", T[4], T[4], 65536)); a(valu("v_add_u32", t0, T[4], t0))
        for d in range(4):
            a(valu("v_xor_b32", t1, d, e)); a(valu("v_lshlrev_b32", t1, 6, t1)); a(valu("v_add_u32", s.vVr[d], t0, t1))
        a(valu("v_lshrrev_b32", t0, 4, L)); a(valu("v_and_b32", t0, 1, t0)); a(valu("v_lshlrev_b32", t0, 17, t0))
        a(valu("v_lshrrev_b32", t1, 5, L)); a(valu("v_lshlrev_b32", t1, 8, t1)); a(valu("v_add_u32", t0, t0, t1))
        a(valu("v_lshlrev_b32", t1, 4, i_)); a(valu("v_add_u32", s.vOst, t0, t1))
        a(raw("s_waitcnt lgkmcnt(0)", "wait"))
        P += s.make_srds(0, cur=True)
        if s.nrounds > 1: P += s.make_srds(1, cur=False)
        return P
    def make_srds(s, r, cur):
        P = []; a = P.append; T = s.sT
        px, pk, pv, pw = S(4), S(6), S(8), S(10)
        K, Vv, W, O = (s.srdK, s.srdV, s.srdWq, s.srdO) if cur else (s.srdKn, s.srdVn, s.srdWqn, s.srdOn)
        if cur:
            a(salu("s_mul_i32", T[0], s.sB, 196608))
            a(salu("s_add_u32", s.srdX.sub(0), S(4), T[0])); a(salu("s_addc_u32", s.srdX.sub(1), S(5), 0))
            a(salu("s_mov_b32", s.srdX.sub(2), 196608)); a(salu("s_mov_b32", s.srdX.sub(3), "0x20000"))
        a(salu("s_add_u32", T[0], s.sHP, 8 * r))
        a(salu("s_lshl_b32", T[1], T[0], 9))
        a(salu("s_add_u32", W.sub(0), S(10), T[1])); a(salu("s_addc_u32", W.sub(1), S(11), 0))
        a(salu("s_sub_u32", W.sub(2), 512 * 8192, T[1])); a(salu("s_mov_b32", W.sub(3), "0x20000"))
        a(salu("s_lshl_b32", T[2], T[0], 1)); a(salu("s_lshr_b32", T[3], s.sW, 1)); a(salu("s_add_u32", T[2], T[2], T[3]))
        a(salu("s_lshl_b32", T[3], s.sB, 5)); a(salu("s_add_u32", T[3], T[3], T[2]))
        a(salu("s_lshl_b32", T[4], T[3], 17)); a(salu("s_lshr_b32", T[5], T[3], 15))
        for srd, lo in ((K, 6), (Vv, 8)):
            a(salu("s_add_u32", srd.sub(0), S(lo), T[4])); a(salu("s_addc_u32", srd.sub(1), S(lo + 1), T[5]))
            a(salu("s_mov_b32", srd.sub(2), 131072)); a(salu("s_mov_b32", srd.sub(3), "0x20000"))
        a(salu("s_lshl_b32", T[3], s.sBR, 4)); a(salu("s_add_u32", T[3], T[3], s.sB)); a(salu("s_mul_i32", T[3], T[3], 12))
        a(salu("s_and_b32", T[4], s.sW, 1)); a(salu("s_mul_i32", T[4], T[4], 6)); a(salu("s_add_u32", T[3], T[3], T[4]))
        a(salu("s_lshl_b32", T[3], T[3], 17)); a(salu("s_lshl_b32", T[2], T[2], 12)); a(salu("s_add_u32", T[3], T[3], T[2]))
        a(salu("s_add_u32", O.sub(0), S(12), T[3])); a(salu("s_addc_u32", O.sub(1), S(13), 0))
        a(salu("s_mov_b32", O.sub(2), 659456)); a(salu("s_mov_b32", O.sub(3), "0x20000"))
        return P

    def pre(s, i): i.note = "pre"; return i
    def dma_q(s, r, st, srdW):
        base = qslot(st); G = []; T = s.sT
        tag = ("Q", r, st)
        for i in range(4):
            so = st * 32 * 8192 + (i & 1) * 32768 + (i >> 1) * 131072 - i * 1024
            grp = []
            if i == 0: grp.append(s.pre(salu("s_add_u32", "m0", s.sM4160, base)))
            grp.append(s.pre(salu("s_add_u32", T[i], s.sWw, so) if so >= 0 else salu("s_sub_u32", T[i], s.sWw, -so)))
            grp.append(dma(s.vW, srdW, T[i], i * 1024, tag=tag))
            G.append(grp)
        for i in range(3):
            grp = []
            if i == 0:
                grp.append(s.pre(salu("s_add_u32", "m0", s.sM3072, base + WQ_SZ)))
                grp.append(s.pre(salu("s_add_u32", T[4], s.sXw, st * 64)))
            grp.append(dma(s.vX[i], s.srdX, T[4], i * 1024, tag=tag))
            G.append(grp)
        return G
    def dma_k(s, r, j, srd, treg):
        G = []
        for u in range(4):
            grp = []
            if u == 0:
                grp.append(s.pre(salu("s_add_u32", "m0", s.sM4096, KPOS(j % 4))))
                grp.append(s.pre(salu("s_add_u32", treg, s.sKw, j * 8192)))
            grp.append(dma(s.vKd[u], srd, treg, u * 1024, flags=s.kv_flags, tag=("K", r, j)))
            G.append(grp)
        return G
    def dma_v(s, r, j, srd, treg):
        G = []
        for u in range(4):
            grp = []
            if u == 0:
                grp.append(s.pre(salu("s_add_u32", "m0", s.sM4096, VPOS(j % 4))))
                grp.append(s.pre(salu("s_add_u32", treg, s.sKw, j * 8192)))
            grp.append(dma(s.vVd, srd, treg, u * 1024, flags=s.kv_flags, tag=("V", r, j)))
            G.append(grp)
        return G
    def rd_A(s, st, t):
        k = QORD[st % 3]; ad = s.vWr[k][t & 1]; off = 64 * (t >> 1)
        return [ds_read("ds_read_b64_tr_b16", s.Af(t).sub(0, 2), ad, off), ds_read("ds_read_b64_tr_b16", s.Af(t).sub(2, 2), ad, off + 1024)]
    def rd_B(s, st, q):
        return ds_read("ds_read_b128", s.Bf(q), s.vXr[QORD[st % 3]], q * 1024)
    def rd_K(s, j, t):
        return ds_read("ds_read_b128", s.Kf(t), s.vKr[t], KPOS(j % 4))
    def rd_V(s, j, u, dt):
        off = (j % 4) * 16384 + u * 4096
        return [ds_read("ds_read_b64_tr_b16", s.Vf(u, dt).sub(0, 2), s.vVr[dt], off), ds_read("ds_read_b64_tr_b16", s.Vf(u, dt).sub(2, 2), s.vVr[dt], off + 2048)]
    def drain_item(s, Q, dt, u, T8, srdO):
        o = s.oacc(Q, dt).sub(8 * u, 8)
        L = []
        for i in range(8): L.append(valu("v_accvgpr_read_b32", T8.sub(i), o.sub(i)))
        for i in range(8): L.append(valu("v_mul_f32", T8.sub(i), T8.sub(i), s.vRL[Q]))
        for i in range(4): L.append(valu("v_cvt_pk_bf16_f32", T8.sub(i), T8.sub(2 * i), T8.sub(2 * i + 1)))
        so = 0 if Q == 0 else s.sQ[Q - 1]
        L.append(vstore("buffer_store_dwordx4", T8.sub(0, 4), s.vOst, srdO, so, dt * 1024 + u * 512, flags=s.o_flags))
        return L
    def conv_item(s, Q, t):
        src = V(64 + 64 * Q + 8 * t, 8); d = s.qfrag(Q, t)
        L = []
        for i in range(8): L.append(valu("v_mul_f32", src.sub(i), s.sScale, src.sub(i)))
        for i in range(4): L.append(valu("v_cvt_pk_bf16_f32", d.sub(i), src.sub(2 * i), src.sub(2 * i + 1)))
        L.append(permswap("v_permlane16_swap_b32", d.sub(0), d.sub(2)))
        L.append(permswap("v_permlane16_swap_b32", d.sub(1), d.sub(3)))
        return L
    def l_final(s):
        L = []; t = s.vTmp
        for Q in range(3):
            L.append(valu("v_mov_b32", s.vRL[Q], s.vL[Q]))
        L.append(nop(1))
        for Q in range(3):
            L.append(permswap("v_permlane32_swap_b32", s.vL[Q], s.vRL[Q]))
        for Q in range(3):
            L.append(valu("v_add_f32", s.vL[Q], s.vL[Q], s.vRL[Q]))
        for Q in range(3):
            L.append(valu("v_rcp_f32", s.vRL[Q], s.vL[Q]))
        return L

    def gen(s):
        P = s.prologue()
        sc = Sched()
        R = s.nrounds
        for st in range(3):
            for grp in s.dma_q(0, st, s.srdWq): P.extend(grp)
        for j in range(2):
            for grp in s.dma_k(0, j, s.srdK, s.sT[5]): P.extend(grp)
            for grp in s.dma_v(0, j, s.srdV, s.sT[5]): P.extend(grp)
        P.append(sync(needs=[("Q", 0, 0)]))
        if "stamp" in s.exp: P.append(stamp(1))
        for t in range(8): P.extend(s.rd_A(0, t))
        for q in range(3): P.append(s.rd_B(0, q))
        marks = {}
        for r in range(R):
            cur = (r % 2 == 0)
            srdW = s.srdWq if cur else s.srdWqn
            srdK = s.srdK if cur else s.srdKn
            srdV = s.srdV if cur else s.srdVn
            srdOprev = s.srdO if (r - 1) % 2 == 0 else s.srdOn
            nW = s.srdWqn if cur else s.srdWq; nK = s.srdKn if cur else s.srdK; nV = s.srdVn if cur else s.srdV
            qb = sc.n()
            for st in range(16):
                order = []
                if st < 15:
                    for half in range(2):
                        for t in range(8):
                            for q in range(3): order.append((3 * half + q, t))
                else:
                    for Pp in range(3):
                        for t in range(8):
                            for q in (2 * Pp, 2 * Pp + 1): order.append((q, t))
                for (q, t) in order:
                    sc.add_bb(mfma16(s.qacc(q, t), s.Af(t), s.Bf(q), s.qacc(q, t) if st else 0))
            ab = sc.n()
            for t in range(8):
                sc.add_bb(mfma32(s.Sreg(0), s.Kf(t), s.qfrag(0, t), s.Sreg(0) if t else 0))
            slot_base = []
            for n in range(48):
                slot_base.append(sc.n())
                if n + 1 < 48:
                    Q = (n + 1) % 3
                    for t in range(8): sc.add_bb(mfma32(s.Sreg(Q), s.Kf(t), s.qfrag(Q, t), s.Sreg(Q) if t else 0))
                if n >= 1:
                    Q = (n - 1) % 3; j = (n - 1) // 3
                    for u in range(2):
                        for dt in range(4):
                            sc.add_bb(mfma32(s.oacc(Q, dt), s.Vf(u, dt), s.Sreg(Q).sub(4 * u, 4), s.oacc(Q, dt) if (j or u) else 0))
            pv47 = sc.n()
            for u in range(2):
                for dt in range(4):
                    sc.add_bb(mfma32(s.oacc(2, dt), s.Vf(u, dt), s.Sreg(2).sub(4 * u, 4), s.oacc(2, dt)))
            aend = sc.n()
            marks[r] = (qb, ab, slot_base, pv47, aend)
        for r in range(R):
            qb, ab, slot_base, pv47, aend = marks[r]
            cur = (r % 2 == 0)
            srdW = s.srdWq if cur else s.srdWqn
            srdK = s.srdK if cur else s.srdKn
            srdV = s.srdV if cur else s.srdVn
            srdOcur = s.srdO if cur else s.srdOn
            srdOprev = s.srdOn if cur else s.srdO
            nW = s.srdWqn if cur else s.srdWq; nK = s.srdKn if cur else s.srdK; nV = s.srdVn if cur else s.srdV
            last = (r == R - 1)
            TS = 8
            for st in range(16):
                b = qb + 48 * st
                for q in range(3, 6): sc.put(b + (q - 3), s.rd_B(st, q))
                need = [("Q", r, st + 1)] if st < 15 else [("K", r, 0), ("V", r, 0)]
                sc.put(b + TS, sync(needs=need))
                if st + 3 < 16: G = s.dma_q(r, st + 3, srdW)
                elif st == 13: G = s.dma_k(r, 2, srdK, s.sT[5]) + s.dma_k(r, 3, srdK, s.sT[6])
                elif st == 14: G = s.dma_v(r, 2, srdV, s.sT[5]) + s.dma_v(r, 3, srdV, s.sT[6])
                else: G = []
                for i, grp in enumerate(G): sc.put(b + TS + 1 + 2 * i, grp)
                if st < 15:
                    for q in range(3): sc.put(b + 24 + q, s.rd_B(st + 1, q))
                    for t in range(8):
                        rr = s.rd_A(st + 1, t)
                        p = b + 24 + 3 * t + 2
                        sc.put(p, rr[0]); sc.put(p + 1, rr[1])
                else:
                    for t in range(8): sc.put(b + 32 + 2 * t + 1, s.rd_K(0, t))
            if r > 0:
                n = 0
                for Q in range(3):
                    for dt in range(4):
                        for u in range(2):
                            st = 1 + n // 2; lo = qb + 48 * st + (n % 2) * 24
                            sc.chain(s.drain_item(Q, dt, u, V(44, 8), srdOprev), lo, lo + 23)
                            n += 1
            b15 = qb + 48 * 15
            conv0 = sum([s.conv_item(0, t) for t in range(8)], [])
            conv1 = sum([s.conv_item(1, t) for t in range(8)], [])
            conv2 = sum([s.conv_item(2, t) for t in range(8)], [])
            def spread(L, lo, hi):
                n = len(L); m = hi - lo + 1
                for i, x in enumerate(L): sc.put(lo + (i * m) // n, x)
            spread(conv0, b15 + 18, b15 + 47)
            spread(conv1, ab, ab + 7)
            spread(conv2, slot_base[0], slot_base[0] + 7)
            for n in range(48):
                sb = slot_base[n]; Q = n % 3; j = n // 3
                nm = (slot_base[n + 1] if n + 1 < 48 else pv47) - sb
                Sg = s.Sreg(Q)
                L = []
                for i in range(16):
                    L.append(valu("v_exp_f32", Sg.sub(i), Sg.sub(i)))
                    if j == 0 and i == 0: L.append(valu("v_mov_b32", s.vL[Q], Sg.sub(i)))
                    else: L.append(valu("v_add_f32", s.vL[Q], s.vL[Q], Sg.sub(i)))
                    if i % 2 == 1: L.append(valu("v_cvt_pk_bf16_f32", Sg.sub(i // 2), Sg.sub(i - 1), Sg.sub(i)))
                E = [x for x in L if x.k == "x"]; rest = [x for x in L if x.k != "x"]
                seq = []
                ri = 0
                seq.append(E[0])
                for i in range(16):
                    if i + 1 < 16: seq.append(E[i + 1])
                    seq.append(rest[ri]); ri += 1
                    if i % 2 == 1: seq.append(rest[ri]); ri += 1
                lo = sb + 1
                if n == 0: lo = sb + 4
                marks.setdefault(("sm", r), []).append((seq, lo, sb + nm - 1))
            for j in range(16):
                n1 = 3 * j + 1; sb = slot_base[n1]
                if j < 15: need = [("K", r, j + 1), ("V", r, j + 1)]
                else: need = [("Q", r + 1, 0)] if not last else []
                sc.put(sb + 3, sync(needs=need))
                if j < 15:
                    for t in range(8): sc.put(sb + 4 + t, s.rd_K(j + 1, t))
                if j + 4 < 16: G = s.dma_k(r, j + 4, srdK, s.sT[5]) + s.dma_v(r, j + 4, srdV, s.sT[6])
                elif not last and j == 12: G = s.dma_k(r + 1, 0, nK, s.sT[5]) + s.dma_v(r + 1, 0, nV, s.sT[6])
                elif not last and j == 13: G = s.dma_k(r + 1, 1, nK, s.sT[5]) + s.dma_v(r + 1, 1, nV, s.sT[6])
                elif not last and j == 14: G = s.dma_q(r + 1, 0, nW)
                elif not last and j == 15: G = s.dma_q(r + 1, 1, nW) + s.dma_q(r + 1, 2, nW)
                else: G = []
                span = 40 if j < 15 else 26
                for i, grp in enumerate(G): sc.put(min(sb + 5 + (i * span) // max(len(G), 1), aend - 1), grp)
                sb0 = slot_base[3 * j]
                off = 8 if j > 0 else 0
                for u in range(2):
                    for dt in range(4):
                        rr = s.rd_V(j, u, dt); p = sb0 + off + 4 * u + dt
                        sc.put(p, rr[0]); sc.put(p, rr[1])
                if j == 15 and not last:
                    for t in range(8):
                        rr = s.rd_A(0, t); sc.put(sb + 8 + 2 * t, rr[0]); sc.put(sb + 9 + 2 * t, rr[1])
                    for q in range(3): sc.put(sb + 4 + q, s.rd_B(0, q))
            for (seq, lo, hi) in marks[("sm", r)]: sc.chain(seq, lo, hi)
            LF = s.l_final()
            for i, x in enumerate(LF): sc.put(pv47 + 1 + (i * 6) // len(LF), x)
        body = sc.linear()
        E = []
        if "stamp" in s.exp: E.append(stamp(2))
        srdO = s.srdO if (R - 1) % 2 == 0 else s.srdOn
        n = 0
        for Q in range(3):
            for dt in range(4):
                for u in range(2):
                    E += s.drain_item(Q, dt, u, V(64 + 8 * (n % 8), 8), srdO); n += 1
        if "stamp" in s.exp:
            E.append(raw("s_waitcnt vmcnt(0)", "wait")); E.append(stamp(3)); E.append(raw("s_waitcnt lgkmcnt(0)", "wait"))
            E += stamp_dump(4, s.sWG, s.sW)
        prog = P + body + E
        prog = insert_waits(prog)
        rep = []
        prog = fix_hazards(prog, report=rep)
        s.prog = prog; s.rep = rep
        name = s.name
        txt = f".globl {name}\n.p2align 8\n.type {name},@function\n{name}:\n" + emit(prog) + f"\nL_{name}_end:\n    s_endpgm\n"
        kd = f""".amdhsa_kernel {name}
  .amdhsa_next_free_vgpr 512
  .amdhsa_next_free_sgpr 102
  .amdhsa_accum_offset 256
  .amdhsa_group_segment_fixed_size 0
  .amdhsa_kernarg_size 104
  .amdhsa_user_sgpr_count 2
  .amdhsa_user_sgpr_kernarg_segment_ptr 1
  .amdhsa_system_sgpr_workgroup_id_x 1
.end_amdhsa_kernel
"""
        return txt, kd
if __name__ == "__main__":
    k = K1(); t, kd = k.gen()
    print(len(t.splitlines()), "lines; hazard pads:", len(k.rep))
    from collections import Counter
    print(Counter((n, x.split()[0]) for n, x in k.rep).most_common(20))
```

```python
from asmlib import *
WS_O = 0
def gen_k2(name="oproj_kernel", o_flags="", w_flags="", depth=3, exp=()):
    P = []
    A_ = P.append
    sKA = S(0, 2); sWG = S(2)
    sW = S(20)
    sWS = S(4, 2); sOut = S(6, 2); sWo = S(8, 2)
    srdO = S(24, 4); srdW = S(28, 4); srdOut = S(32, 4)
    sT0, sT1, sT2, sT3, sT4 = S(10), S(11), S(12), S(13), S(14)
    sBR, sNB, sRG = S(15), S(16), S(17)
    sOoff = S(36)
    sWoff = S(37)
    sLds = S(38)
    sTmpA, sTmpB = S(40), S(41)
    A_(scmp("s_cmp_ge_u32", sWG, 256)); A_(raw(f"s_cbranch_scc1 L_{name}_end", "br"))
    if "stamp" in exp: A_(stamp(0))
    A_(salu("s_and_b32", sT0, sWG, 7)); A_(salu("s_lshr_b32", sT1, sWG, 3))
    A_(salu("s_and_b32", sNB, sT1, 3)); A_(salu("s_lshr_b32", sT1, sT1, 2))
    A_(salu("s_lshl_b32", sT0, sT0, 3)); A_(salu("s_add_u32", sRG, sT0, sT1))
    A_(salu("s_lshr_b32", sBR, sRG, 5))
    A_(salu("s_mul_i32", sT2, sBR, 40))
    A_(salu("s_add_u32", S(18), S(0), sT2)); A_(salu("s_addc_u32", S(19), S(1), 0))
    A_(raw("s_load_dwordx2 s[8:9], s[18:19], 32", "s", r=[S(18, 2)], w=[sWo]))
    A_(raw("s_load_dwordx2 s[6:7], s[0:1], 80", "s", r=[sKA], w=[sOut]))
    A_(raw("s_load_dwordx2 s[4:5], s[0:1], 96", "s", r=[sKA], w=[sWS]))
    vLane, vT0, vT1, vT2, vT3 = V(1), V(2), V(3), V(4), V(5)
    A_(valu("v_lshrrev_b32", vT0, 6, V(0))); A_(valu("v_and_b32", vLane, 63, V(0)))
    A_(valu("v_readfirstlane_b32", sW, vT0))
    vG, vI, vE, vC = V(6), V(7), V(8), V(9)
    A_(valu("v_lshrrev_b32", vG, 4, vLane)); A_(valu("v_and_b32", vI, 15, vLane))
    A_(valu("v_lshrrev_b32", vE, 2, vI)); A_(valu("v_and_b32", vC, 3, vI))
    vB = [V(10 + q) for q in range(6)]
    A_(valu("v_lshlrev_b32", vB[0], 4, vLane))
    for q in range(1, 6): A_(valu("v_add_u32", vB[q], q * 131072, vB[0]))
    vD = [V(16 + u) for u in range(4)]
    A_(valu("v_lshlrev_b32", vT0, 2, vG)); A_(valu("v_xor_b32", vT0, vT0, vI)); A_(valu("v_lshlrev_b32", vT0, 4, vT0))
    A_(valu("v_lshlrev_b32", vT1, 10, vG)); A_(valu("v_add_u32", vD[0], vT0, vT1))
    for u in range(1, 4): A_(valu("v_add_u32", vD[u], u * (4096 - 1056), vD[0]))
    vA = [V(20 + b) for b in range(4)]
    A_(salu("s_mul_i32", sLds, sW, 33792))
    A_(valu("v_lshrrev_b32", vT0, 1, vG)); A_(valu("v_lshlrev_b32", vT0, 2, vT0)); A_(valu("v_and_b32", vT1, 1, vG))
    A_(valu("v_add_u32", vT0, vT0, vT1)); A_(valu("v_mul_u32_u24", vT0, 1056, vT0))
    A_(valu("v_lshlrev_b32", vT1, 8, vE)); A_(valu("v_add_u32", vT0, vT0, vT1))
    A_(valu("v_lshlrev_b32", vT1, 3, vC)); A_(valu("v_add_u32", vT0, vT0, vT1))
    A_(valu("v_add_u32", vT0, sLds, vT0))
    for b in range(4):
        A_(salu("s_add_u32", sT0, sW, b)); A_(salu("s_and_b32", sT0, sT0, 3))
        A_(valu("v_xor_b32", vT1, sT0, vE)); A_(valu("v_lshlrev_b32", vT1, 6, vT1)); A_(valu("v_add_u32", vA[b], vT0, vT1))
    A_(raw("s_waitcnt lgkmcnt(0)", "wait"))
    A_(salu("s_mul_i32", sT0, sRG, 6 * 131072)); A_(salu("s_mul_hi_u32", sT1, sRG, 6 * 131072))
    A_(salu("s_add_u32", srdO.sub(0), S(4), sT0)); A_(salu("s_addc_u32", srdO.sub(1), S(5), sT1))
    if WS_O:
        A_(salu("s_add_u32", srdO.sub(0), srdO.sub(0), WS_O)); A_(salu("s_addc_u32", srdO.sub(1), srdO.sub(1), 0))
    A_(salu("s_mov_b32", srdO.sub(2), 786432)); A_(salu("s_mov_b32", srdO.sub(3), "0x20000"))
    A_(salu("s_lshl_b32", sT0, sNB, 8))
    A_(salu("s_add_u32", srdW.sub(0), S(8), sT0)); A_(salu("s_addc_u32", srdW.sub(1), S(9), 0))
    A_(salu("s_sub_u32", srdW.sub(2), 4096 * 1024, sT0)); A_(salu("s_mov_b32", srdW.sub(3), "0x20000"))
    A_(salu("s_and_b32", sT1, sRG, 31)); A_(salu("s_mul_i32", sT1, sT1, 96 * 2048))
    A_(salu("s_lshl_b32", sT2, sBR, 10)); A_(salu("s_add_u32", sT1, sT1, sT2)); A_(salu("s_add_u32", sT1, sT1, sT0))
    A_(salu("s_add_u32", srdOut.sub(0), S(6), sT1)); A_(salu("s_addc_u32", srdOut.sub(1), S(7), 0))
    A_(salu("s_mov_b32", srdOut.sub(2), 95 * 2048 + 256)); A_(salu("s_mov_b32", srdOut.sub(3), "0x20000"))
    A_(salu("s_lshl_b32", sOoff, sW, 15)); A_(salu("s_lshl_b32", sWoff, sW, 20))

    NK = 32
    accV = 64; accA = 0
    def acc(beta2, q):
        if beta2 < 2: return V(accV + (beta2 * 6 + q) * 4, 4)
        return A(accA + ((beta2 - 2) * 6 + q) * 4, 4)
    Bset = lambda ks, q: V(112 + (ks % 4) * 24 + q * 4, 4)
    Afr = lambda t: A(144 + t * 4, 4)
    def issue(ks):
        g = []
        slot = ks % 4
        for half in range(2):
            m0 = salu("s_add_u32", "m0", sLds, slot * 8448 + half * 4224); m0.note = "pre"
            so = salu("s_add_u32", sTmpA if half == 0 else sTmpB, sWoff, ks * 32768 + half * 16384); so.note = "pre"
            for u in range(4):
                d = dma(vD[u], srdW, sTmpA if half == 0 else sTmpB, u * 1056, flags=w_flags, tag=("W", ks))
                g.append([m0, so, d] if u == 0 else [d])
        so = salu("s_add_u32", S(42), sOoff, ks * 1024); so.note = "pre"
        for q in range(6):
            l = vload("buffer_load_dwordx4", Bset(ks, q), vB[q], srdO, S(42), 0, flags=o_flags, tag=("B", ks))
            g.append([so, l] if q == 0 else [l])
        return g
    def areads(ks, t):
        b = t >> 1; lo = t & 1
        base = (ks % 4) * 8448 + 32 * lo
        return [ds_read("ds_read_b64_tr_b16", Afr(t).sub(0, 2), vA[b], base),
                ds_read("ds_read_b64_tr_b16", Afr(t).sub(2, 2), vA[b], base + 2112)]
    for ks in range(depth):
        for grp in issue(ks): P.extend(grp)
    P.append(sync(needs=[("W", 0)], lgkm0=False, barrier=False))
    if "stamp" in exp: P.append(stamp(1))
    for t in range(8): P.extend(areads(0, t))
    sc = Sched()
    for ks in range(NK):
        base = sc.n()
        for t in range(8):
            for q in range(6):
                sc.add_bb(mfma16(acc(t, q), Afr(t), Bset(ks, q), acc(t, q) if ks else 0))
    for ks in range(NK):
        base = ks * 48
        if ks + depth < NK:
            grps = issue(ks + depth)
            for i, grp in enumerate(grps):
                sc.put(base + 1 + 3 * i, grp)
        if ks + 1 < NK:
            sc.put(base + 5, sync(needs=[("W", ks + 1)], lgkm0=False, barrier=False))
            for t in range(8):
                r = areads(ks + 1, t)
                p = base + 6 * t + 5
                sc.put(p, r[0]); sc.put(min(p + 1, sc.n() - 1), r[1])
    body = sc.linear()
    E = []; A_ = E.append
    if "stamp" in exp: A_(stamp(2))
    A_(nop(7)); A_(nop(7))
    A_(sync(needs=[], lgkm0=True, barrier=True))
    vR = [V(24 + d) for d in range(4)]
    A_(valu("v_lshlrev_b32", vT0, 4, vLane))
    for d in range(1, 4):
        A_(salu("s_add_u32", sT0, sW, d)); A_(salu("s_and_b32", sT0, sT0, 3))
        A_(salu("s_mul_i32", sT0, sT0, 3 * 12288)); A_(salu("s_add_u32", sT0, sT0, (d - 1) * 12288))
        A_(valu("v_add_u32", vR[d], sT0, vT0))
    A_(salu("s_mul_i32", sT0, sW, 3 * 12288)); A_(valu("v_add_u32", vR[0], sT0, vT0))
    for d in range(1, 4):
        for lo in range(2):
            for q in range(6):
                A_(ds_write("ds_write_b128", vR[d], acc(2 * d + lo, q), (lo * 6 + q) * 1024))
    A_(sync(needs=[], lgkm0=True, barrier=True))
    tmp = lambda i: V(112 + 4 * i, 4)
    n = 0
    for si in range(3):
        for lo in range(2):
            for q in range(6):
                A_(ds_read("ds_read_b128", tmp((si * 12 + lo * 6 + q) % 24), vR[0], si * 12288 + (lo * 6 + q) * 1024))
                n += 1
        if si == 1:
            pass
        if si >= 0:
            pass
    E2 = E[:-36]
    reads = E[-36:]
    E = E2; A_ = E.append
    def addin(si):
        for lo in range(2):
            for q in range(6):
                t = tmp((si * 12 + lo * 6 + q) % 24); a = acc(lo, q)
                for r in range(4): A_(valu("v_add_f32", a.sub(r), a.sub(r), t.sub(r)))
    E += reads[:24]; addin(0); E += reads[24:]; addin(1); addin(2)
    vO = V(28)
    A_(valu("v_lshlrev_b32", vT0, 11, vI)); A_(valu("v_lshlrev_b32", vT1, 4, vG)); A_(valu("v_add_u32", vT0, vT0, vT1))
    A_(salu("s_lshl_b32", sT0, sW, 6)); A_(valu("v_add_u32", vO, sT0, vT0))
    for q in range(6):
        X = V(208 + 4 * q, 4)
        a0, a1 = acc(0, q), acc(1, q)
        A_(valu("v_cvt_pk_bf16_f32", X.sub(0), a0.sub(0), a0.sub(1))); A_(valu("v_cvt_pk_bf16_f32", X.sub(1), a0.sub(2), a0.sub(3)))
        A_(valu("v_cvt_pk_bf16_f32", X.sub(2), a1.sub(0), a1.sub(1))); A_(valu("v_cvt_pk_bf16_f32", X.sub(3), a1.sub(2), a1.sub(3)))
    for q in range(6):
        X = V(208 + 4 * q, 4)
        A_(permswap("v_permlane32_swap_b32", X.sub(0), X.sub(2))); A_(permswap("v_permlane32_swap_b32", X.sub(1), X.sub(3)))
    for q in range(6):
        X = V(208 + 4 * q, 4)
        A_(permswap("v_permlane16_swap_b32", X.sub(0), X.sub(2))); A_(permswap("v_permlane16_swap_b32", X.sub(1), X.sub(3)))
    for q in range(6):
        X = V(208 + 4 * q, 4)
        A_(salu("s_mov_b32", sT1, q * 32768))
        A_(vstore("buffer_store_dwordx4", X, vO, srdOut, sT1))
    if "stamp" in exp:
        E.append(raw("s_waitcnt vmcnt(0)", "wait")); E.append(stamp(3)); E.append(raw("s_waitcnt lgkmcnt(0)", "wait"))
        E += stamp_dump(4, sWG, sW)
    if "nomfma" in exp: body = [x for x in body if x.k != "m16"]
    if "noW" in exp:
        body = [x for x in body if x.k != "dma"]
    if "noO" in exp:
        body = [x for x in body if x.k != "vl"]
    prog = P + body + E
    prog = insert_waits(prog)
    rep = []
    prog = fix_hazards(prog, report=rep)
    txt = f".globl {name}\n.p2align 8\n.type {name},@function\n{name}:\n" + emit(prog) + f"\nL_{name}_end:\n    s_endpgm\n"
    kd = f""".amdhsa_kernel {name}
  .amdhsa_next_free_vgpr 512
  .amdhsa_next_free_sgpr 102
  .amdhsa_accum_offset 256
  .amdhsa_group_segment_fixed_size 0
  .amdhsa_kernarg_size 104
  .amdhsa_user_sgpr_count 2
  .amdhsa_user_sgpr_kernarg_segment_ptr 1
  .amdhsa_system_sgpr_workgroup_id_x 1
.end_amdhsa_kernel
"""
    return txt, kd, rep
if __name__ == "__main__":
    t, kd, rep = gen_k2()
    print(len(t.splitlines()), "lines; hazards padded:", len(rep))
    for r in rep[:20]: print(r)
```

```python
import sys
sys.path.insert(0, "gen")
from build import build
from k1gen import K1, LDS_BYTES
from k2gen import gen_k2
def make(path, k1kw={}, k2kw={}, which="both"):
    parts = []; launches = []
    if which in ("both", "k1"):
        k = K1(**k1kw); t, kd = k.gen(); parts.append((t, kd)); launches.append((k.name, 256, 256, LDS_BYTES))
    if which in ("both", "k2"):
        t, kd, rep = gen_k2(**k2kw); parts.append((t, kd)); launches.append(("oproj_kernel", 256, 256, 163840))
    open(path, "w").write(build(parts, launches))
if __name__ == "__main__":
    make("full.s")
    make("full_stamp.s", k1kw=dict(exp=("stamp",)), which="k1")
```

```python
import re

def R(kind, n, cnt=1):
    return [(kind, n + i) for i in range(cnt)]
def vr(n, cnt=1):
    return f"v{n}" if cnt == 1 else f"v[{n}:{n+cnt-1}]"
def ar(n, cnt=1):
    return f"a{n}" if cnt == 1 else f"a[{n}:{n+cnt-1}]"
def sr(n, cnt=1):
    return f"s{n}" if cnt == 1 else f"s[{n}:{n+cnt-1}]"

class Reg:
    __slots__ = ("k", "n", "c")
    def __init__(s, k, n, c=1): s.k, s.n, s.c = k, n, c
    def __str__(s): return f"{s.k}{s.n}" if s.c == 1 else f"{s.k}[{s.n}:{s.n+s.c-1}]"
    def regs(s): return [(s.k, s.n + i) for i in range(s.c)]
    def sub(s, off, c=1):
        assert 0 <= off and off + c <= s.c, (str(s), off, c)
        return Reg(s.k, s.n + off, c)
def V(n, c=1): return Reg("v", n, c)
def A(n, c=1): return Reg("a", n, c)
def S(n, c=1): return Reg("s", n, c)
M0 = ("m0", 0); VCC = ("vcc", 0); SCC = ("scc", 0); EXEC = ("exec", 0)

def regs_of(x):
    if x is None: return []
    if isinstance(x, Reg): return x.regs()
    if isinstance(x, tuple): return [x]
    if isinstance(x, (list,)):
        o = []
        for y in x: o += regs_of(y)
        return o
    return []

class Ins:
    __slots__ = ("t", "k", "r", "w", "tag", "needs", "c", "lds_r", "lds_w", "note", "nwait")
    def __init__(s, t, k, r=(), w=(), tag=None, needs=None, c=None):
        s.t, s.k = t, k
        s.r = regs_of(list(r)); s.w = regs_of(list(w))
        s.tag = tag; s.needs = needs; s.c = c
        s.note = None
    def units(s):
        return {"x": 2}.get(s.k, 1)
    def is_valu(s): return s.k in ("v", "x", "perm")
    def __repr__(s): return s.t

def fmt(x): return str(x)
def mfma32(d, a, b, c):
    cr = regs_of(c) if isinstance(c, Reg) else []
    return Ins(f"v_mfma_f32_32x32x16_bf16 {d}, {a}, {b}, {c}", "m32", r=[a, b] + ([c] if cr else []), w=[d], c=cr)
def mfma16(d, a, b, c):
    cr = regs_of(c) if isinstance(c, Reg) else []
    return Ins(f"v_mfma_f32_16x16x32_bf16 {d}, {a}, {b}, {c}", "m16", r=[a, b] + ([c] if cr else []), w=[d], c=cr)
def valu(op, d, *src, extra_w=(), extra_r=(), mod=""):
    k = "x" if op in ("v_exp_f32", "v_rcp_f32", "v_log_f32", "v_rsq_f32", "v_sqrt_f32") else "v"
    t = f"{op} {d}, " + ", ".join(fmt(x) for x in src) + (" " + mod if mod else "")
    r = [x for x in src if isinstance(x, Reg)] + list(extra_r)
    if op in ("v_fmac_f32",): r.append(d)
    return Ins(t, k, r=r, w=[d] + list(extra_w))
def permswap(op, d, s):
    return Ins(f"{op} {d}, {s}", "perm", r=[d, s], w=[d, s])
def salu(op, d, *src, scc=True):
    t = f"{op} {d}, " + ", ".join(fmt(x) for x in src)
    dd = M0 if d == "m0" else d
    r = [x for x in src if isinstance(x, Reg)] + ([M0] if "m0" in src else [])
    if op in ("s_addc_u32", "s_subb_u32", "s_cselect_b32", "s_cselect_b64"): r.append(SCC)
    w = [dd]
    if op not in ("s_mov_b32", "s_mov_b64", "s_mul_i32", "s_mul_hi_u32", "s_cselect_b32", "s_cselect_b64", "s_movk_i32"): w.append(SCC)
    return Ins(t, "s", r=r, w=w)
def scmp(op, a, b):
    return Ins(f"{op} {a}, {b}", "s", r=[x for x in (a, b) if isinstance(x, Reg)], w=[SCC])
def ds_read(op, d, addr, off=0):
    assert 0 <= off < 65536, off
    return Ins(f"{op} {d}, {addr}" + (f" offset:{off}" if off else ""), "ds", r=[addr], w=[d])
def ds_write(op, addr, data, off=0):
    assert 0 <= off < 65536, off
    return Ins(f"{op} {addr}, {data}" + (f" offset:{off}" if off else ""), "dsw", r=[addr, data])
def dma(voff, srd, soff, off=0, flags="", tag=None):
    assert 0 <= off < 4096
    so = fmt(soff)
    return Ins(f"buffer_load_dwordx4 {voff}, {srd}, {so} offen" + (f" offset:{off}" if off else "") + (f" {flags}" if flags else "") + " lds",
               "dma", r=[voff, srd, soff if isinstance(soff, Reg) else None, M0], tag=tag)
def vload(op, d, voff, srd, soff, off=0, flags="", tag=None):
    assert 0 <= off < 4096
    return Ins(f"{op} {d}, {voff}, {srd}, {fmt(soff)} offen" + (f" offset:{off}" if off else "") + (f" {flags}" if flags else ""),
               "vl", r=[voff, srd, soff if isinstance(soff, Reg) else None], w=[d], tag=tag)
def vstore(op, data, voff, srd, soff, off=0, flags="", tag=None):
    assert 0 <= off < 4096
    return Ins(f"{op} {data}, {voff}, {srd}, {fmt(soff)} offen" + (f" offset:{off}" if off else "") + (f" {flags}" if flags else ""),
               "vs", r=[data, voff, srd, soff if isinstance(soff, Reg) else None], tag=tag)
def sync(needs=(), lgkm0=True, barrier=True, note=""):
    i = Ins("SYNC " + note, "sync"); i.needs = list(needs); i.c = (lgkm0, barrier); return i
def raw(t, k="s", r=(), w=()):
    return Ins(t, k, r=r, w=w)
def nop(n): return Ins(f"s_nop {n}", "nop")
def label(name): return Ins(f"{name}:", "label")

class Sched:
    def __init__(s):
        s.bb = []; s.gap = []
    def add_bb(s, ins):
        s.bb.append(ins); s.gap.append([]); return len(s.bb) - 1
    def n(s): return len(s.bb)
    def load(s, i):
        g = s.gap[i]
        nv = sum(1 for x in g if x.is_valu()); un = sum(x.units() for x in g if x.is_valu()); nt = len(g)
        return nv, un, nt
    def fits(s, i, ins):
        nv, un, nt = s.load(i)
        k = s.bb[i].k
        if ins.is_valu():
            nv += 1; un += ins.units()
        nt += 1
        if k == "m32": return nv <= CAP32[0] and un <= CAP32[1] and nt <= CAP32[2]
        if k == "m16": return nv <= CAP16[0] and un <= CAP16[1] and nt <= CAP16[2]
        return True
    def put(s, i, ins):
        if isinstance(ins, list):
            for x in ins: s.put(i, x)
            return i
        s.gap[i].append(ins); return i
    def place(s, ins, lo, hi, step=0):
        hi = min(hi, len(s.bb) - 1); lo = min(lo, hi)
        grp = ins if isinstance(ins, list) else [ins]
        for i in range(lo, hi + 1):
            ok = True; n0 = len(s.gap[i])
            for x in grp:
                if not s.fits(i, x): ok = False; break
                s.gap[i].append(x)
            if ok: return i
            del s.gap[i][n0:]
        best = min(range(lo, hi + 1), key=lambda i: (s.load(i)[1] * 4 + s.load(i)[2], -i))
        best = hi
        s.gap[best] += grp
        return best
    def chain(s, inss, lo, hi):
        n = len(inss); cur = lo
        for j, x in enumerate(inss):
            tgt = max(cur, lo + (j * (hi - lo + 1)) // max(n, 1))
            cur = s.place(x, tgt, hi)
        return cur
    def linear(s):
        out = []
        for b, g in zip(s.bb, s.gap):
            out.append(b)
            first = [x for x in g if x.k in ("dma", "vl", "vs") or getattr(x, "note", None) == "first"]
            out += order_gap(g)
        return out
CAP32 = [5, 6, 6]
CAP16 = [1, 2, 2]

def indep(x, y):
    xr, xw, yr, yw = set(x.r), set(x.w), set(y.r), set(y.w)
    return not ((xr | xw) & yw) and not (xw & yr)
def order_gap(g):
    res = []; seg = []
    def flush():
        a = []; b = []
        for x in seg:
            want = (x.note == "pre") or (x.k in ("dma", "vl", "vs") and x.note != "nofirst")
            if want and all(indep(x, y) for y in b): a.append(x)
            else: b.append(x)
        res.extend(a + b); seg.clear()
    for x in g:
        if x.k in ("sync", "label", "br"):
            flush(); res.append(x)
        else:
            seg.append(x)
    flush()
    return res

def insert_waits(prog, verbose=False):
    out = []
    lg = []
    vm = []
    def wait(vmn=None, lgn=None):
        parts = []
        if vmn is not None: parts.append(f"vmcnt({min(vmn,62)})")
        if lgn is not None: parts.append(f"lgkmcnt({min(lgn,14)})")
        w = Ins("s_waitcnt " + " ".join(parts), "wait"); out.append(w)
    for ins in prog:
        if ins.k == "sync":
            lgkm0, bar = ins.c
            vmn = None
            idx = -1
            for j, (d, tag) in enumerate(vm):
                if tag is not None and tag in ins.needs: idx = j
            if idx >= 0:
                vmn = len(vm) - 1 - idx
                del vm[:idx + 1]
            lgn = None
            if lgkm0 and lg:
                lgn = 0; lg.clear()
            if vmn is not None or lgn is not None: wait(vmn, lgn)
            if bar: out.append(Ins("s_barrier", "bar"))
            continue
        if ins.k in ("label", "br"):
            out.append(ins); continue
        touched = set(ins.r) | set(ins.w)
        idx = -1
        for j, d in enumerate(lg):
            if d & touched: idx = j
        lgn = None; vmn = None
        if idx >= 0:
            lgn = len(lg) - 1 - idx; del lg[:idx + 1]
        idx = -1
        for j, (d, tag) in enumerate(vm):
            if d & touched: idx = j
        if idx >= 0:
            vmn = len(vm) - 1 - idx; del vm[:idx + 1]
        if lgn is not None or vmn is not None: wait(vmn, lgn)
        out.append(ins)
        if ins.k == "ds": lg.append(set(ins.w))
        elif ins.k == "dsw": lg.append(set())
        elif ins.k == "dma": vm.append((set(), ins.tag))
        elif ins.k == "vl": vm.append((set(ins.w), ins.tag))
        elif ins.k == "vs": vm.append((set(), ins.tag))
    return out

def states(ins):
    if ins.k == "nop":
        return int(ins.t.split()[1]) + 1
    if ins.k in ("label",): return 0
    return 1

def fix_hazards(prog, insert=True, report=None):
    out = []
    pos = 0
    last_valu_w = {}
    last_trans_w = {}
    last_mfma_w = {}
    last_mfma_c = {}
    last_m0 = -99
    last_vsgpr_w = {}
    last_store = {}
    nops = 0
    for ins in prog:
        need = 0
        def req(p, d):
            nonlocal need
            need = max(need, d - (pos - p - 1))
        k = ins.k
        if k in ("m32", "m16"):
            cset = set(ins.c or [])
            dt = tuple(ins.w)
            for r in ins.r:
                if r in last_valu_w: req(last_valu_w[r], 2)
                if r in last_mfma_w:
                    p, passes, pd = last_mfma_w[r]
                    if r in cset:
                        same = (tuple(ins.c) == pd) and passes == (8 if k == "m32" else 4)
                        if not same: req(p, 10 if passes == 8 else 6)
                    ab = [x for x in ins.r if x not in cset]
                    if r in ab: req(p, 12 if passes == 8 else 8)
            for r in ins.w:
                if r in last_mfma_w and r not in cset:
                    p, passes, pd = last_mfma_w[r]
                    req(p, 10 if passes == 8 else 6)
        else:
            isv = ins.is_valu()
            for r in list(ins.r) + list(ins.w):
                if r in last_mfma_w and (isv or k in ("ds", "dsw", "dma", "vl", "vs")):
                    p, passes, pd = last_mfma_w[r]
                    req(p, 12 if passes == 8 else 8)
            if isv:
                for r in ins.w:
                    if r in last_mfma_c:
                        p, passes = last_mfma_c[r]; req(p, 7 if passes == 8 else 3)
                    if r in last_store: req(last_store[r], 2)
                if k != "x":
                    for r in ins.r:
                        if r in last_trans_w: req(last_trans_w[r], 1)
                if k == "perm":
                    for r in ins.r:
                        if r in last_valu_w: req(last_valu_w[r], 2)
                for r in ins.r:
                    if r in last_vsgpr_w: req(last_vsgpr_w[r], 2)
                if ins.t.startswith("v_readfirstlane") or ins.t.startswith("v_readlane"):
                    for r in ins.r:
                        if r in last_valu_w: req(last_valu_w[r], 1)
            if k in ("ds", "vl"):
                for r in ins.w:
                    if r in last_store: req(last_store[r], 1)
            if k in ("dma",):
                req(last_m0, 1)
            if k in ("dma", "vl", "vs"):
                for r in ins.r:
                    if r in last_vsgpr_w: req(last_vsgpr_w[r], 5)
            if k == "s":
                for r in ins.r:
                    if r in last_vsgpr_w: req(last_vsgpr_w[r], 1)
        if need > 0:
            if report is not None: report.append((need, ins.t))
            if insert:
                n = need
                while n > 0:
                    m = min(n, 16); out.append(nop(m - 1)); pos += m; n -= m; nops += 1
        out.append(ins)
        if k in ("m32", "m16"):
            passes = 8 if k == "m32" else 4
            for r in ins.w:
                last_mfma_w[r] = (pos, passes, tuple(ins.w)); last_valu_w.pop(r, None)
            for r in (ins.c or []): last_mfma_c[r] = (pos, passes)
        elif ins.is_valu():
            for r in ins.w:
                if r[0] in ("v", "a"):
                    last_valu_w[r] = pos; last_mfma_w.pop(r, None)
                    if k == "x": last_trans_w[r] = pos
                    else: last_trans_w.pop(r, None)
                elif r[0] in ("s", "vcc"):
                    last_vsgpr_w[r] = pos
        elif k == "s":
            for r in ins.w:
                if r == M0: last_m0 = pos
                last_vsgpr_w.pop(r, None)
        elif k in ("ds", "vl"):
            for r in ins.w:
                last_mfma_w.pop(r, None); last_valu_w.pop(r, None); last_trans_w.pop(r, None)
        if k == "vs" and ("x4" in ins.t or "x3" in ins.t):
            for r in ins.r:
                if r[0] in ("v", "a"): last_store[r] = pos
        pos += states(ins)
    return out

def emit(prog):
    L = []
    for i in prog:
        L.append(i.t if i.k == "label" else "    " + i.t)
    return "\n".join(L)

STAMP_CYC = [False]
def stamp(i):
    op = "s_memtime" if STAMP_CYC[0] else "s_memrealtime"
    return Ins(f"{op} s[{80+2*i}:{81+2*i}]", "s", w=[S(80+2*i, 2)])
def cstamp(i):
    return Ins(f"s_memtime s[{80+2*i}:{81+2*i}]", "s", w=[S(80+2*i, 2)])
def stamp_dump(n, sWG, sWave, ws_off=280000000):
    L = []
    L.append(raw("s_load_dwordx2 s[76:77], s[0:1], 96", "s"))
    L.append(raw("s_waitcnt lgkmcnt(0)", "wait"))
    L.append(raw(f"s_add_u32 s76, s76, {ws_off}")); L.append(raw("s_addc_u32 s77, s77, 0"))
    L.append(raw("s_mov_b32 s78, 65536")); L.append(raw("s_mov_b32 s79, 0x20000"))
    L.append(raw(f"s_lshl_b32 s74, {sWG}, 2")); L.append(raw(f"s_add_u32 s74, s74, {sWave}")); L.append(raw("s_lshl_b32 s74, s74, 6"))
    L.append(raw("v_mov_b32 v2, s74", "v"))
    L.append(raw("s_mov_b64 exec, 1"))
    for i in range(n):
        L.append(raw(f"v_mov_b32 v3, s{80+2*i}", "v"))
        L.append(raw("s_nop 1", "nop"))
        L.append(raw(f"buffer_store_dword v3, v2, s[76:79], 0 offen offset:{4*i}", "raw"))
        L.append(raw("s_nop 1", "nop"))
    return L
```

```python
from asmlib import *
import struct, math
def f2u(x): return struct.unpack("<I", struct.pack("<f", x))[0]
QSCALE = math.log2(math.e) / math.sqrt(128.0)

KPOS = lambda p: p * 16384 if p < 4 else 131072
VPOS = lambda p: 65536 + p * 16384 if p < 4 else 147456
QSLOT = {"X": 32768, "Y": 98304, "Z": 131072}
QORD = ["Z", "X", "Y"]
def qslot(s): return QSLOT[QORD[s % 3]]
WQ_SZ = 16640
LDS_BYTES = 163840

class K1:
    def __init__(s, name="attn_kernel", kv_flags="nt", o_flags="sc1", q_flags="", exp=(), nrounds=2, ring=4, qstep=6, astep=3, wo_pf=True, merged=False, tdepth=3):
        s.name = name; s.kv_flags = kv_flags; s.o_flags = o_flags; s.q_flags = q_flags; s.exp = exp; s.nrounds = nrounds
        s.ring = ring; s.qstep = qstep; s.astep = astep; s.wo_pf = wo_pf; s.merged = merged; s.tdepth = tdepth
        s.sWG = S(2); s.sW = S(3)
        s.sPtr = S(4, 8)
        s.sWS = S(12, 2); s.sWoP = S(14, 2)
        s.srdX = S(16, 4); s.srdWq = S(20, 4); s.srdK = S(24, 4); s.srdV = S(28, 4); s.srdO = S(32, 4)
        s.srdKn = S(36, 4); s.srdVn = S(40, 4); s.srdWqn = S(44, 4); s.srdOn = S(48, 4)
        s.srdPf = S(52, 4)
        s.sM3072 = S(56); s.sM4160 = S(57)
        s.sT = [S(58 + i) for i in range(8)]
        s.sScale = S(66); s.sB = S(67); s.sHP = S(68); s.sBR = S(69); s.sFlag = S(70)
        s.sQ = [S(71), S(72)]
        s.sCw = S(73); s.sCx = S(74); s.sKo = S(75); s.sVo = S(76); s.sM4096 = S(77)
        s.vLane = V(1)
        s.vX = [V(2), V(3), V(4)]
        s.vW = [V(5), V(39), V(40), V(41)]
        s.vKd = [V(6 + u) for u in range(4)]
        s.vVd = V(10)
        s.vWr = {k: [V(11 + 2 * i), V(12 + 2 * i)] for i, k in enumerate(QORD)}
        s.vXr = {k: V(17 + i) for i, k in enumerate(QORD)}
        s.vKr = [V(20 + t) for t in range(8)]
        s.vVr = [V(28 + d) for d in range(4)]
        s.vL = [V(32 + q) for q in range(3)]
        s.vRL = [V(35 + q) for q in range(3)]
        s.vOst = V(38)
        s.vPf = V(42); s.vDum = V(51)
        s.dT = V(44, 8)
        s.Bv = [V(52 + 4 * q, 4) for q in range(3)]
        s.vKr4 = [V(112 + t) for t in range(8)]; s.vVr4 = [V(120 + d) for d in range(4)]

    def qacc(s, q, t): return V(64 + 64 * (q >> 1) + 8 * t + 4 * (q & 1), 4)
    def qfrag(s, Q, t): return V(64 + 64 * Q + 4 * t, 4)
    def Sreg(s, Q): return V(64 + 64 * Q + 32, 16)
    def oacc(s, Q, dt): return A(64 * Q + 16 * dt, 16)
    def Kf(s, t): return A(192 + 4 * t, 4)
    def Vf(s, u, dt): return A(224 + 4 * (4 * u + dt), 4)
    def Af(s, t): return A(192 + 4 * t, 4)
    def Bf(s, q): return s.Bv[q] if q < 3 else A(224 + 4 * (q - 3), 4)

    def prologue(s):
        P = []; a = P.append; T = s.sT
        a(scmp("s_cmp_ge_u32", s.sWG, 256)); a(raw(f"s_cbranch_scc1 L_{s.name}_end", "br"))
        a(salu("s_and_b32", T[0], s.sWG, 7)); a(salu("s_lshr_b32", T[1], s.sWG, 3))
        a(salu("s_lshr_b32", s.sBR, T[0], 2))
        a(salu("s_and_b32", T[2], T[0], 3)); a(salu("s_lshl_b32", T[2], T[2], 2)); a(salu("s_lshr_b32", T[3], T[1], 3))
        a(salu("s_add_u32", s.sB, T[2], T[3]))
        a(salu("s_and_b32", s.sHP, T[1], 7))
        a(salu("s_mul_i32", T[4], s.sBR, 40))
        a(salu("s_add_u32", T[6], S(0), T[4])); a(salu("s_addc_u32", T[7], S(1), 0))
        a(raw(f"s_load_dwordx8 s[4:11], s[{T[6].n}:{T[7].n}], 0", "s", r=[T[6], T[7]], w=[s.sPtr]))
        a(raw("s_load_dwordx2 s[12:13], s[0:1], 96", "s", r=[S(0, 2)], w=[s.sWS]))
        a(salu("s_lshr_b32", T[4], s.sWG, 7)); a(salu("s_mul_i32", T[4], T[4], 40))
        a(salu("s_add_u32", T[4], S(0), T[4])); a(salu("s_addc_u32", T[5], S(1), 0))
        a(raw(f"s_load_dwordx2 s[14:15], s[{T[4].n}:{T[5].n}], 32", "s", r=[T[4], T[5]], w=[s.sWoP]))
        t0, t1, t2, t3 = V(44), V(45), V(46), V(47)
        L = s.vLane
        a(valu("v_lshrrev_b32", t0, 6, V(0))); a(valu("v_and_b32", L, 63, V(0)))
        a(valu("v_readfirstlane_b32", s.sW, t0))
        a(valu("v_lshrrev_b32", t0, 2, L)); a(valu("v_lshlrev_b32", t0, 10, t0))
        a(salu("s_and_b32", T[0], s.sW, 1)); a(salu("s_lshr_b32", T[1], s.sW, 1))
        a(valu("v_lshrrev_b32", t1, 5, L)); a(valu("v_lshlrev_b32", t2, 1, t1)); a(valu("v_and_b32", t3, 3, L))
        a(valu("v_xor_b32", t3, t3, t2)); a(valu("v_lshlrev_b32", t3, 4, t3)); a(valu("v_add_u32", t0, t0, t3))
        a(salu("s_mul_i32", T[2], s.sW, 49152)); a(valu("v_add_u32", s.vX[0], T[2], t0))
        a(valu("v_add_u32", s.vX[1], 15360, s.vX[0])); a(valu("v_add_u32", s.vX[2], 30720, s.vX[0]))
        a(valu("v_and_b32", t3, 31, L)); a(valu("v_xor_b32", t3, t3, t2)); a(valu("v_lshlrev_b32", t3, 4, t3))
        a(valu("v_lshlrev_b32", t0, 13, t1)); a(valu("v_add_u32", t0, t0, t3))
        a(salu("s_lshl_b32", T[2], T[0], 1)); a(salu("s_lshl_b32", T[3], T[1], 3)); a(salu("s_add_u32", T[2], T[2], T[3])); a(salu("s_lshl_b32", T[2], T[2], 13))
        a(valu("v_add_u32", s.vW[0], T[2], t0))
        for i in range(1, 4): a(valu("v_add_u32", s.vW[i], (i & 1) * 32768 + (i >> 1) * 131072 - i * 1024, s.vW[0]))
        a(valu("v_lshrrev_b32", t0, 4, L)); a(valu("v_and_b32", t1, 15, L))
        a(valu("v_lshlrev_b32", t2, 8, t0)); a(salu("s_lshl_b32", T[2], T[0], 12)); a(valu("v_add_u32", t2, T[2], t2))
        a(valu("v_xor_b32", t3, t1, t0))
        for u in range(4):
            a(valu("v_xor_b32", s.vKd[u], 4 * u, t3)); a(valu("v_lshlrev_b32", s.vKd[u], 4, s.vKd[u])); a(valu("v_add_u32", s.vKd[u], s.vKd[u], t2))
        a(valu("v_lshlrev_b32", t3, 2, t0)); a(valu("v_xor_b32", t3, t3, t1)); a(valu("v_lshlrev_b32", t3, 4, t3)); a(valu("v_add_u32", s.vVd, t3, t2))
        a(salu("s_mul_i32", s.sM3072, s.sW, 3072)); a(salu("s_mul_i32", s.sM4160, s.sW, 4160)); a(salu("s_lshl_b32", s.sM4096, s.sW, 12))
        if "norot" in s.exp:
            a(salu("s_mov_b32", T[2], 15)); a(salu("s_mov_b32", T[3], 15))
        else:
            a(salu("s_lshl_b32", T[2], s.sHP, 1)); a(salu("s_lshl_b32", T[3], s.sB, 2)); a(salu("s_add_u32", T[2], T[2], T[3]))
            a(salu("s_add_u32", T[2], T[2], 15)); a(salu("s_and_b32", T[2], T[2], 15))
            a(salu("s_lshr_b32", T[3], s.sWG, 3)); a(salu("s_lshl_b32", T[4], T[1], 3)); a(salu("s_add_u32", T[3], T[3], T[4]))
            a(salu("s_add_u32", T[3], T[3], 15)); a(salu("s_and_b32", T[3], T[3], 15))
        a(salu("s_lshl_b32", s.sCw, T[2], 18)); a(salu("s_lshl_b32", s.sCx, T[2], 6))
        a(salu("s_lshl_b32", s.sKo, T[3], 13)); a(salu("s_lshl_b32", s.sVo, T[3], 13))
        a(salu("s_mov_b32", s.sScale, f"0x{f2u(QSCALE):08x}"))
        a(salu("s_mov_b32", s.sQ[0], 262144)); a(salu("s_mov_b32", s.sQ[1], 524288)); a(salu("s_mov_b32", s.sFlag, 0))
        g, i_, e, c = V(48), V(49), V(50), V(51)
        a(valu("v_lshrrev_b32", g, 4, L)); a(valu("v_and_b32", i_, 15, L)); a(valu("v_lshrrev_b32", e, 2, i_)); a(valu("v_and_b32", c, 3, i_))
        a(valu("v_lshrrev_b32", t0, 1, e)); a(valu("v_and_b32", t1, 1, g)); a(valu("v_lshlrev_b32", t1, 1, t1)); a(valu("v_add_u32", t0, t0, t1))
        a(valu("v_mul_u32_u24", t0, 4160, t0))
        a(valu("v_lshrrev_b32", t1, 1, g)); a(valu("v_lshlrev_b32", t1, 11, t1)); a(valu("v_add_u32", t0, t0, t1))
        a(valu("v_and_b32", t2, 1, e))
        a(valu("v_lshlrev_b32", t1, 9, t2)); a(valu("v_add_u32", t0, t0, t1))
        a(valu("v_lshlrev_b32", t1, 3, c)); a(valu("v_add_u32", t0, t0, t1))
        a(salu("s_lshl_b32", T[4], T[1], 8)); a(valu("v_add_u32", t0, T[4], t0))
        a(valu("v_lshlrev_b32", t1, 5, t2))
        a(valu("v_add_u32", t3, t0, t1))
        a(valu("v_sub_u32", t0, t0, t1)); a(valu("v_add_u32", t0, 32, t0))
        for k in QORD:
            a(valu("v_add_u32", s.vWr[k][0], QSLOT[k], t3)); a(valu("v_add_u32", s.vWr[k][1], QSLOT[k], t0))
        a(valu("v_lshrrev_b32", t0, 3, i_)); a(valu("v_lshlrev_b32", t0, 1, t0)); a(valu("v_xor_b32", t0, t0, g)); a(valu("v_lshlrev_b32", t0, 4, t0))
        a(valu("v_lshlrev_b32", t1, 6, i_)); a(valu("v_add_u32", t0, t0, t1))
        a(salu("s_mul_i32", T[4], T[0], 96 * 64)); a(valu("v_add_u32", t0, T[4], t0))
        for k in QORD: a(valu("v_add_u32", s.vXr[k], QSLOT[k] + WQ_SZ, t0))
        a(valu("v_lshrrev_b32", t0, 5, L)); a(valu("v_and_b32", t1, 31, L)); a(valu("v_and_b32", t2, 15, L))
        a(valu("v_xor_b32", t0, t0, t2)); a(valu("v_lshlrev_b32", t0, 4, t0))
        a(valu("v_lshlrev_b32", t1, 8, t1))
        a(salu("s_lshl_b32", T[4], T[1], 13)); a(valu("v_add_u32", t1, T[4], t1))
        for t in range(8):
            a(valu("v_xor_b32", s.vKr[t], 32 * t, t0)); a(valu("v_add_u32", s.vKr[t], s.vKr[t], t1))
        a(valu("v_lshrrev_b32", t0, 5, L)); a(valu("v_lshlrev_b32", t0, 2, t0)); a(valu("v_add_u32", t0, t0, e)); a(valu("v_lshlrev_b32", t0, 8, t0))
        a(valu("v_and_b32", t1, 1, g)); a(valu("v_lshlrev_b32", t1, 5, t1)); a(valu("v_add_u32", t0, t0, t1))
        a(valu("v_lshlrev_b32", t1, 3, c)); a(valu("v_add_u32", t0, t0, t1))
        a(salu("s_add_u32", T[4], T[4], 65536)); a(valu("v_add_u32", t0, T[4], t0))
        for d in range(4):
            a(valu("v_xor_b32", t1, d, e)); a(valu("v_lshlrev_b32", t1, 6, t1)); a(valu("v_add_u32", s.vVr[d], t0, t1))
        a(valu("v_lshrrev_b32", t0, 4, L)); a(valu("v_and_b32", t0, 1, t0)); a(valu("v_lshlrev_b32", t0, 17, t0))
        a(valu("v_lshrrev_b32", t1, 5, L)); a(valu("v_lshlrev_b32", t1, 8, t1)); a(valu("v_add_u32", t0, t0, t1))
        a(valu("v_lshlrev_b32", t1, 4, i_)); a(valu("v_add_u32", s.vOst, t0, t1))
        a(valu("v_lshlrev_b32", s.vPf, 7, V(0)))
        a(raw("s_waitcnt lgkmcnt(0)", "wait"))
        P += s.make_srds(0, cur=True)
        if s.nrounds > 1: P += s.make_srds(1, cur=False)
        a(salu("s_and_b32", T[0], s.sWG, 127)); a(salu("s_lshl_b32", T[0], T[0], 15))
        a(salu("s_add_u32", s.srdPf.sub(0), S(14), T[0])); a(salu("s_addc_u32", s.srdPf.sub(1), S(15), 0))
        a(salu("s_mov_b32", s.srdPf.sub(2), 32768)); a(salu("s_mov_b32", s.srdPf.sub(3), "0x20000"))
        return P
    def make_srds(s, r, cur):
        P = []; a = P.append; T = s.sT
        K, Vv, W, O = (s.srdK, s.srdV, s.srdWq, s.srdO) if cur else (s.srdKn, s.srdVn, s.srdWqn, s.srdOn)
        if cur:
            a(salu("s_mul_i32", T[0], s.sB, 196608))
            a(salu("s_add_u32", s.srdX.sub(0), S(4), T[0])); a(salu("s_addc_u32", s.srdX.sub(1), S(5), 0))
            a(salu("s_mov_b32", s.srdX.sub(2), 196608)); a(salu("s_mov_b32", s.srdX.sub(3), "0x20000"))
        a(salu("s_add_u32", T[0], s.sHP, 8 * r))
        a(salu("s_lshl_b32", T[1], T[0], 9))
        a(salu("s_add_u32", W.sub(0), S(10), T[1])); a(salu("s_addc_u32", W.sub(1), S(11), 0))
        a(salu("s_sub_u32", W.sub(2), 512 * 8192, T[1])); a(salu("s_mov_b32", W.sub(3), "0x20000"))
        a(salu("s_lshl_b32", T[2], T[0], 1)); a(salu("s_lshr_b32", T[3], s.sW, 1)); a(salu("s_add_u32", T[2], T[2], T[3]))
        a(salu("s_lshl_b32", T[3], s.sB, 5)); a(salu("s_add_u32", T[3], T[3], T[2]))
        a(salu("s_lshl_b32", T[4], T[3], 17)); a(salu("s_lshr_b32", T[5], T[3], 15))
        for srd, lo in ((K, 6), (Vv, 8)):
            a(salu("s_add_u32", srd.sub(0), S(lo), T[4])); a(salu("s_addc_u32", srd.sub(1), S(lo + 1), T[5]))
            a(salu("s_mov_b32", srd.sub(2), 131072)); a(salu("s_mov_b32", srd.sub(3), "0x20000"))
        a(salu("s_lshl_b32", T[3], s.sBR, 4)); a(salu("s_add_u32", T[3], T[3], s.sB)); a(salu("s_mul_i32", T[3], T[3], 12))
        a(salu("s_and_b32", T[4], s.sW, 1)); a(salu("s_mul_i32", T[4], T[4], 6)); a(salu("s_add_u32", T[3], T[3], T[4]))
        a(salu("s_lshl_b32", T[3], T[3], 17)); a(salu("s_lshl_b32", T[2], T[2], 12)); a(salu("s_add_u32", T[3], T[3], T[2]))
        a(salu("s_add_u32", O.sub(0), S(12), T[3])); a(salu("s_addc_u32", O.sub(1), S(13), 0))
        a(salu("s_mov_b32", O.sub(2), 659456)); a(salu("s_mov_b32", O.sub(3), "0x20000"))
        return P

    def pre(s, i): i.note = "pre"; return i
    def adv_q(s):
        return [salu("s_add_u32", s.sCw, s.sCw, 1 << 18), salu("s_add_u32", s.sCx, s.sCx, 64),
                salu("s_and_b32", s.sCw, s.sCw, (1 << 22) - 1), salu("s_and_b32", s.sCx, s.sCx, 1023)]
    def dma_q(s, r, st, srdW):
        base = qslot(st); tag = ("Q", r, st)
        L = [s.pre(salu("s_add_u32", "m0", s.sM4160, base))]
        for i in range(4): L.append(dma(s.vW[i], srdW, s.sCw, i * 1024, flags=s.q_flags, tag=tag))
        L.append(s.pre(salu("s_add_u32", "m0", s.sM3072, base + WQ_SZ)))
        for i in range(3): L.append(dma(s.vX[i], s.srdX, s.sCx, i * 1024, flags=s.q_flags, tag=tag))
        return L
    def adv_kv(s, which):
        o = s.sKo if which == "K" else s.sVo
        return [salu("s_add_u32", o, o, 8192), salu("s_and_b32", o, o, 0x1FFFF)]
    def dma_kv(s, which, r, j, srd):
        o = s.sKo if which == "K" else s.sVo
        p = j % s.ring
        L = [s.pre(salu("s_add_u32", "m0", s.sM4096, KPOS(p) if which == "K" else VPOS(p)))]
        for u in range(4):
            L.append(dma(s.vKd[u] if which == "K" else s.vVd, srd, o, u * 1024, flags=s.kv_flags, tag=(which, r, j)))
        return L
    def rd_A(s, st, t):
        k = QORD[st % 3]; ad = s.vWr[k][t & 1]; off = 64 * (t >> 1)
        return [ds_read("ds_read_b64_tr_b16", s.Af(t).sub(0, 2), ad, off), ds_read("ds_read_b64_tr_b16", s.Af(t).sub(2, 2), ad, off + 1024)]
    def rd_B(s, st, q):
        return ds_read("ds_read_b128", s.Bf(q), s.vXr[QORD[st % 3]], q * 1024)
    def rd_K(s, j, t):
        p = j % s.ring
        if p < 4: return ds_read("ds_read_b128", s.Kf(t), s.vKr[t], KPOS(p))
        return ds_read("ds_read_b128", s.Kf(t), s.vKr4[t], 0)
    def rd_V(s, j, u, dt):
        p = j % s.ring
        ad, off = (s.vVr[dt], p * 16384 + u * 4096) if p < 4 else (s.vVr4[dt], u * 4096)
        return [ds_read("ds_read_b64_tr_b16", s.Vf(u, dt).sub(0, 2), ad, off), ds_read("ds_read_b64_tr_b16", s.Vf(u, dt).sub(2, 2), ad, off + 2048)]
    def drain_item(s, Q, dt, u, T8, srdO, rnd):
        o = s.oacc(Q, dt).sub(8 * u, 8)
        L = []
        for i in range(8): L.append(valu("v_accvgpr_read_b32", T8.sub(i), o.sub(i)))
        for i in range(8): L.append(valu("v_mul_f32", T8.sub(i), T8.sub(i), s.vRL[Q]))
        for i in range(4): L.append(valu("v_cvt_pk_bf16_f32", T8.sub(i), T8.sub(2 * i), T8.sub(2 * i + 1)))
        so = 0 if Q == 0 else s.sQ[Q - 1]
        L.append(vstore("buffer_store_dwordx4", T8.sub(0, 4), s.vOst, srdO, so, dt * 1024 + u * 512, flags=s.o_flags, tag=("O", rnd)))
        return L
    def conv_item(s, Q, t):
        src = V(64 + 64 * Q + 8 * t, 8); d = s.qfrag(Q, t)
        L = []
        for i in range(8): L.append(valu("v_mul_f32", src.sub(i), s.sScale, src.sub(i)))
        for i in range(4): L.append(valu("v_cvt_pk_bf16_f32", d.sub(i), src.sub(2 * i), src.sub(2 * i + 1)))
        L.append(permswap("v_permlane16_swap_b32", d.sub(0), d.sub(2)))
        L.append(permswap("v_permlane16_swap_b32", d.sub(1), d.sub(3)))
        return L
    def conv_pair(s, Q):
        items = [s.conv_item(Q, t) for t in range(8)]
        L = []
        for t in range(8):
            L += items[t][:12]
            if t > 0: L += items[t - 1][12:]
        L.append(nop(0)); L += items[7][12:]
        return L
    def l_final(s):
        L = []
        for Q in range(3): L.append(valu("v_mov_b32", s.vRL[Q], s.vL[Q]))
        for Q in range(3): L.append(permswap("v_permlane32_swap_b32", s.vL[Q], s.vRL[Q]))
        for Q in range(3): L.append(valu("v_add_f32", s.vL[Q], s.vL[Q], s.vRL[Q]))
        for Q in range(3): L.append(valu("v_rcp_f32", s.vRL[Q], s.vL[Q]))
        return L

    def t_regs(s):
        s.srdTO = S(80, 4); s.srdTW = S(84, 4); s.srdOut = S(88, 4); s.srdCnt = S(92, 4)
        s.sLds = S(78); s.sOoff = S(79); s.sWoff = S(96); s.sTa = S(97); s.sTb = S(98); s.sTc = S(99)
        s.tB = [V(11 + q) for q in range(6)]
        s.tD = [V(2 + u) for u in range(4)]
        s.tA = [V(17), V(18), V(19), V(39)]
        s.tT = [V(40), V(41)]
        s.vOne = V(44); s.vPoll = V(45); s.vCnt = V(46); s.vZero = s.vCnt
        s.sCntC = S(14); s.sCntP = S(15); s.srdSig = S(4, 4)
        s.outofline = []
    def t_scalar_setup(s):
        L = []; a = L.append; T = s.sT
        a(salu("s_and_b32", T[0], s.sWG, 7)); a(salu("s_lshr_b32", T[1], s.sWG, 3))
        a(salu("s_and_b32", T[2], T[1], 3)); a(salu("s_lshr_b32", T[1], T[1], 2))
        a(salu("s_lshl_b32", T[0], T[0], 3)); a(salu("s_add_u32", T[0], T[0], T[1]))
        a(salu("s_lshr_b32", T[1], T[0], 5))
        a(salu("s_mul_i32", T[3], T[1], 40))
        a(salu("s_add_u32", T[4], S(0), T[3])); a(salu("s_addc_u32", T[5], S(1), 0))
        a(raw(f"s_load_dwordx2 s[84:85], s[{T[4].n}:{T[5].n}], 32", "s", r=[T[4], T[5]], w=[S(84, 2)]))
        a(raw("s_load_dwordx4 s[88:91], s[0:1], 80", "s", r=[S(0, 2)], w=[S(88, 4)]))
        a(raw("s_waitcnt lgkmcnt(0)", "wait"))
        a(salu("s_mov_b32", s.srdCnt.sub(0), S(90))); a(salu("s_mov_b32", s.srdCnt.sub(1), S(91)))
        a(salu("s_mov_b32", s.srdCnt.sub(2), 256)); a(salu("s_mov_b32", s.srdCnt.sub(3), "0x20000"))
        a(salu("s_lshl_b32", T[6], T[2], 8))
        a(salu("s_add_u32", s.srdTW.sub(0), S(84), T[6])); a(salu("s_addc_u32", s.srdTW.sub(1), S(85), 0))
        a(salu("s_sub_u32", s.srdTW.sub(2), 4096 * 1024, T[6])); a(salu("s_mov_b32", s.srdTW.sub(3), "0x20000"))
        a(salu("s_and_b32", T[3], T[0], 31)); a(salu("s_mul_i32", T[3], T[3], 96 * 2048))
        a(salu("s_lshl_b32", T[4], T[1], 10)); a(salu("s_add_u32", T[3], T[3], T[4])); a(salu("s_add_u32", T[3], T[3], T[6]))
        a(salu("s_add_u32", s.srdOut.sub(0), S(88), T[3])); a(salu("s_addc_u32", s.srdOut.sub(1), S(89), 0))
        a(salu("s_mov_b32", s.srdOut.sub(2), 95 * 2048 + 256)); a(salu("s_mov_b32", s.srdOut.sub(3), "0x20000"))
        a(salu("s_mul_i32", T[3], T[0], 6 * 131072)); a(salu("s_mul_hi_u32", T[4], T[0], 6 * 131072))
        a(salu("s_add_u32", s.srdTO.sub(0), S(12), T[3])); a(salu("s_addc_u32", s.srdTO.sub(1), S(13), T[4]))
        a(salu("s_mov_b32", s.srdTO.sub(2), 786432)); a(salu("s_mov_b32", s.srdTO.sub(3), "0x20000"))
        a(salu("s_lshr_b32", T[0], T[0], 1)); a(salu("s_lshl_b32", s.sCntC, T[0], 3))
        a(salu("s_lshl_b32", T[0], s.sBR, 4)); a(salu("s_add_u32", T[0], T[0], s.sB)); a(salu("s_lshl_b32", s.sCntP, T[0], 3))
        a(salu("s_mul_i32", s.sLds, s.sW, 33792)); a(salu("s_lshl_b32", s.sOoff, s.sW, 14)); a(salu("s_lshl_b32", s.sWoff, s.sW, 19))
        a(salu("s_mov_b32", s.srdSig.sub(0), s.srdCnt.sub(0))); a(salu("s_mov_b32", s.srdSig.sub(1), s.srdCnt.sub(1)))
        a(scmp("s_cmp_eq_u32", s.sW, 0)); a(salu("s_cselect_b32", s.srdSig.sub(2), 256, 0)); a(salu("s_mov_b32", s.srdSig.sub(3), "0x20000"))
        return L
    def t_vector_setup(s):
        L = []; a = L.append; t0, t1 = s.tT; T = s.sT; Ln = s.vLane
        a(valu("v_lshlrev_b32", s.tB[0], 4, Ln))
        for q in range(1, 6): a(valu("v_add_u32", s.tB[q], q * 131072, s.tB[0]))
        a(valu("v_lshrrev_b32", t0, 4, Ln)); a(valu("v_and_b32", t1, 15, Ln))
        a(valu("v_lshlrev_b32", s.tD[1], 2, t0)); a(valu("v_xor_b32", s.tD[1], s.tD[1], t1)); a(valu("v_lshlrev_b32", s.tD[1], 4, s.tD[1]))
        a(valu("v_lshlrev_b32", s.tD[0], 10, t0)); a(valu("v_add_u32", s.tD[0], s.tD[0], s.tD[1]))
        for u in range(1, 4): a(valu("v_add_u32", s.tD[u], u * (4096 - 1056), s.tD[0]))
        A0, A1, A2, A3 = s.tA
        a(valu("v_lshrrev_b32", A0, 1, t0)); a(valu("v_lshlrev_b32", A0, 2, A0)); a(valu("v_and_b32", A1, 1, t0))
        a(valu("v_add_u32", A0, A0, A1)); a(valu("v_mul_u32_u24", A0, 1056, A0))
        a(valu("v_and_b32", A1, 3, t1)); a(valu("v_lshlrev_b32", A1, 3, A1)); a(valu("v_add_u32", A0, A0, A1))
        a(valu("v_lshrrev_b32", t1, 2, t1))
        a(valu("v_lshlrev_b32", A1, 8, t1)); a(valu("v_add_u32", A0, A0, A1))
        a(valu("v_add_u32", t0, s.sLds, A0))
        for b in range(4):
            a(salu("s_add_u32", T[0], s.sW, b)); a(salu("s_and_b32", T[0], T[0], 3))
            a(valu("v_xor_b32", s.tA[b], T[0], t1)); a(valu("v_lshlrev_b32", s.tA[b], 6, s.tA[b])); a(valu("v_add_u32", s.tA[b], s.tA[b], t0))
        return L
    def t_acc(s, beta2, q):
        if beta2 < 2: return V(64 + (beta2 * 6 + q) * 4, 4)
        return A(((beta2 - 2) * 6 + q) * 4, 4)
    def t_B(s, ks, q): return V(112 + (ks % 4) * 24 + q * 4, 4)
    def t_A(s, t): return A(192 + t * 4, 4)
    def t_ksg(s, ks): return ks if ks < 16 else 64 + (ks - 16)
    def t_issue_w(s, ks):
        L = []; slot = ks % 4; g = s.t_ksg(ks)
        for half in range(2):
            so = s.sTa if half == 0 else s.sTb
            L.append(s.pre(salu("s_add_u32", so, s.sWoff, g * 32768 + half * 16384)))
            L.append(s.pre(salu("s_add_u32", "m0", s.sLds, slot * 8448 + half * 4224)))
            for u in range(4): L.append(dma(s.tD[u], s.srdTW, so, u * 1056, tag=("W", ks)))
        return L
    def t_issue_b(s, ks):
        L = [s.pre(salu("s_add_u32", s.sTc, s.sOoff, s.t_ksg(ks) * 1024))]
        for q in range(6): L.append(vload("buffer_load_dwordx4", s.t_B(ks, q), s.tB[q], s.srdTO, s.sTc, 0, flags="sc1", tag=("B", ks)))
        return L
    def t_areads(s, ks, t):
        b = t >> 1; lo = t & 1; base = (ks % 4) * 8448 + 32 * lo
        return [ds_read("ds_read_b64_tr_b16", s.t_A(t).sub(0, 2), s.tA[b], base), ds_read("ds_read_b64_tr_b16", s.t_A(t).sub(2, 2), s.tA[b], base + 2112)]
    def signal(s, rnd):
        T = s.sT
        return [salu("s_add_u32", T[6], s.sCntP, 4 * rnd),
                vstore("buffer_atomic_add", s.vOne, s.vCnt, s.srdSig, T[6], 0, flags="sc1", tag=("SIG", rnd))]
    def poll_issue(s, rnd):
        T = s.sT
        return [salu("s_add_u32", T[7], s.sCntC, 4 * rnd),
                vload("buffer_load_dword", s.vPoll, s.vZero, s.srdCnt, T[7], 0, flags="sc1", tag=("POLL", rnd))]
    def poll_check(s, rnd):
        n = s.name; T = s.sT; lab = f"L_{n}_poll{rnd}"
        L = [valu("v_readfirstlane_b32", T[5], s.vPoll), scmp("s_cmp_ge_u32", T[5], 8),
             raw(f"s_cbranch_scc0 {lab}_spin", "br"), label(f"{lab}_ok")]
        spin = [label(f"{lab}_spin"), raw(f"s_mov_b32 s{T[4].n}, 0x40000"),
                label(f"{lab}_loop"), raw("s_sleep 4"),
                raw(f"buffer_load_dword {s.vPoll}, {s.vZero}, {s.srdCnt}, s{T[7].n} offen sc1"),
                raw("s_waitcnt vmcnt(0)"), raw(f"v_readfirstlane_b32 s{T[5].n}, {s.vPoll}"), raw("s_nop 1"),
                raw(f"s_cmp_ge_u32 s{T[5].n}, 8"), raw(f"s_cbranch_scc1 {lab}_ok"),
                raw(f"s_sub_u32 s{T[4].n}, s{T[4].n}, 1"), raw(f"s_cmp_lg_u32 s{T[4].n}, 0"),
                raw(f"s_cbranch_scc1 {lab}_loop"), raw(f"s_branch {lab}_ok")]
        s.outofline += spin
        return L
    def t_epilogue(s):
        E = []; a = E.append; T = s.sT; Ln = s.vLane
        a(nop(7)); a(nop(7))
        a(sync(needs=[], lgkm0=True, barrier=True))
        vR = [V(24 + d) for d in range(4)]; t0 = V(28); t1 = V(29); vO = V(30)
        a(valu("v_lshlrev_b32", t0, 4, Ln))
        for d in range(1, 4):
            a(salu("s_add_u32", T[0], s.sW, d)); a(salu("s_and_b32", T[0], T[0], 3))
            a(salu("s_mul_i32", T[0], T[0], 3 * 12288)); a(salu("s_add_u32", T[0], T[0], (d - 1) * 12288))
            a(valu("v_add_u32", vR[d], T[0], t0))
        a(salu("s_mul_i32", T[0], s.sW, 3 * 12288)); a(valu("v_add_u32", vR[0], T[0], t0))
        for d in range(1, 4):
            for lo in range(2):
                for q in range(6): a(ds_write("ds_write_b128", vR[d], s.t_acc(2 * d + lo, q), (lo * 6 + q) * 1024))
        a(sync(needs=[], lgkm0=True, barrier=True))
        tmp = lambda i: V(112 + 4 * i, 4)
        reads = []
        for si in range(3):
            for lo in range(2):
                for q in range(6):
                    reads.append(ds_read("ds_read_b128", tmp((si * 12 + lo * 6 + q) % 24), vR[0], si * 12288 + (lo * 6 + q) * 1024))
        def addin(si):
            for lo in range(2):
                for q in range(6):
                    t = tmp((si * 12 + lo * 6 + q) % 24); ac = s.t_acc(lo, q)
                    for r in range(4): a(valu("v_add_f32", ac.sub(r), ac.sub(r), t.sub(r)))
        E.extend(reads[:24]); addin(0); E.extend(reads[24:]); addin(1); addin(2)
        a(valu("v_and_b32", t0, 15, Ln)); a(valu("v_lshlrev_b32", t0, 11, t0))
        a(valu("v_lshrrev_b32", t1, 4, Ln)); a(valu("v_lshlrev_b32", t1, 4, t1)); a(valu("v_add_u32", t0, t0, t1))
        a(salu("s_lshl_b32", T[0], s.sW, 6)); a(valu("v_add_u32", vO, T[0], t0))
        X = lambda q: V(208 + 4 * q, 4)
        for q in range(6):
            a0, a1 = s.t_acc(0, q), s.t_acc(1, q)
            a(valu("v_cvt_pk_bf16_f32", X(q).sub(0), a0.sub(0), a0.sub(1))); a(valu("v_cvt_pk_bf16_f32", X(q).sub(1), a0.sub(2), a0.sub(3)))
            a(valu("v_cvt_pk_bf16_f32", X(q).sub(2), a1.sub(0), a1.sub(1))); a(valu("v_cvt_pk_bf16_f32", X(q).sub(3), a1.sub(2), a1.sub(3)))
        for q in range(6):
            a(permswap("v_permlane32_swap_b32", X(q).sub(0), X(q).sub(2))); a(permswap("v_permlane32_swap_b32", X(q).sub(1), X(q).sub(3)))
        for q in range(6):
            a(permswap("v_permlane16_swap_b32", X(q).sub(0), X(q).sub(2))); a(permswap("v_permlane16_swap_b32", X(q).sub(1), X(q).sub(3)))
        for q in range(6):
            a(salu("s_mov_b32", T[1], q * 32768)); a(vstore("buffer_store_dwordx4", X(q), vO, s.srdOut, T[1]))
        return E

    def gen(s):
        if s.merged: s.t_regs()
        P = s.prologue()
        if s.merged: P += s.t_scalar_setup()
        sc = Sched(); s.sc = sc
        R = s.nrounds; RING = s.ring
        for st in range(3): P += s.adv_q() + s.dma_q(0, st, s.srdWq)
        for j in range(2):
            P += s.adv_kv("K") + s.dma_kv("K", 0, j, s.srdK)
            P += s.adv_kv("V") + s.dma_kv("V", 0, j, s.srdV)
        P.append(sync(needs=[("Q", 0, 0)]))
        for t in range(8): P.extend(s.rd_A(0, t))
        for q in range(3): P.append(s.rd_B(0, q))
        marks = {}
        for r in range(R):
            qb = sc.n()
            for st in range(16):
                order = []
                if st < 15:
                    for half in range(2):
                        for t in range(8):
                            for q in range(3): order.append((3 * half + q, t))
                else:
                    for Pp in range(3):
                        for t in range(8):
                            for q in (2 * Pp, 2 * Pp + 1): order.append((q, t))
                for (q, t) in order:
                    sc.add_bb(mfma16(s.qacc(q, t), s.Af(t), s.Bf(q), s.qacc(q, t) if st else 0))
            ab = sc.n()
            for t in range(8):
                sc.add_bb(mfma32(s.Sreg(0), s.Kf(t), s.qfrag(0, t), s.Sreg(0) if t else 0))
            slot_base = []
            for n in range(48):
                slot_base.append(sc.n())
                if n + 1 < 48:
                    Q = (n + 1) % 3
                    for t in range(8): sc.add_bb(mfma32(s.Sreg(Q), s.Kf(t), s.qfrag(Q, t), s.Sreg(Q) if t else 0))
                if n >= 1:
                    Q = (n - 1) % 3; j = (n - 1) // 3
                    for u in range(2):
                        for dt in range(4):
                            sc.add_bb(mfma32(s.oacc(Q, dt), s.Vf(u, dt), s.Sreg(Q).sub(4 * u, 4), s.oacc(Q, dt) if (j or u) else 0))
            pv47 = sc.n()
            for u in range(2):
                for dt in range(4):
                    sc.add_bb(mfma32(s.oacc(2, dt), s.Vf(u, dt), s.Sreg(2).sub(4 * u, 4), s.oacc(2, dt)))
            marks[r] = (qb, ab, slot_base, pv47, sc.n())
        def seq(lo, L, step=1):
            p = lo; lastv = -10**9
            for x in L:
                if x.k in ("dma", "vl", "vs"):
                    p = max(p, lastv + step); lastv = p
                sc.put(min(p, sc.n() - 1), x); p += 1
            return p
        for r in range(R):
            qb, ab, slot_base, pv47, aend = marks[r]
            cur = (r % 2 == 0)
            srdW = s.srdWq if cur else s.srdWqn
            srdK = s.srdK if cur else s.srdKn
            srdV = s.srdV if cur else s.srdVn
            srdOprev = s.srdOn if cur else s.srdO
            nW = s.srdWqn if cur else s.srdWq; nK = s.srdKn if cur else s.srdK; nV = s.srdVn if cur else s.srdV
            last = (r == R - 1)
            TS = 8
            for st in range(16):
                b = qb + 48 * st
                for q in range(3, 6): sc.put(b + (q - 2), s.rd_B(st, q))
                need = [("Q", r, st + 1)] if st < 15 else [("K", r, 0), ("V", r, 0)]
                if st + 3 < 16:
                    seq(b + 4, s.adv_q()); D = s.dma_q(r, st + 3, srdW)
                elif st == 13:
                    seq(b + 4, s.adv_kv("K"))
                    D = s.dma_kv("K", r, 2, srdK) + s.adv_kv("K") + s.dma_kv("K", r, 3, srdK)
                elif st == 14:
                    seq(b + 4, s.adv_kv("V"))
                    D = s.dma_kv("V", r, 2, srdV) + s.adv_kv("V") + s.dma_kv("V", r, 3, srdV)
                else: D = []
                if RING == 5 and r > 0 and st < 2:
                    D = D + s.adv_kv("K") + s.dma_kv("K", r, st, srdK) + s.adv_kv("V") + s.dma_kv("V", r, st, srdV)
                sc.put(b + TS, sync(needs=need))
                seq(b + TS + 1, D, s.qstep if len(D) <= 14 else 3)
                if st < 15:
                    for q in range(3): sc.put(b + 21 + q, s.rd_B(st + 1, q))
                    for t in range(8):
                        rr = s.rd_A(st + 1, t); p = b + 24 + 3 * t + 2
                        sc.put(p, rr[0]); sc.put(p + 1, rr[1])
                else:
                    for t in range(8): sc.put(b + 32 + 2 * t + 1, s.rd_K(0, t))
            if r > 0:
                L = []
                for Q in range(3):
                    for dt in range(4):
                        for u in range(2): L += s.drain_item(Q, dt, u, s.dT, srdOprev, r - 1)
                sc.chain(L, qb + 4, qb + 48 * 14 + 40)
            b15 = qb + 48 * 15
            def spread(L, lo, hi):
                n = len(L); m = hi - lo + 1
                for i, x in enumerate(L): sc.put(lo + (i * m) // n, x)
            spread(s.conv_pair(0), b15 + 18, b15 + 47)
            spread(s.conv_pair(1), ab, ab + 7)
            extra = []
            if RING == 5:
                extra = [valu("v_add_u32", s.vKr4[t], 131072, s.vKr[t]) for t in range(8)] + [valu("v_add_u32", s.vVr4[d], 147456 - 65536, s.vVr[d]) for d in range(4)]
            spread(s.conv_pair(2), slot_base[0], slot_base[0] + 7)
            if extra: spread(extra, slot_base[1], slot_base[1] + 7)
            def kv_next(which, jj):
                srd = srdK if which == "K" else srdV
                if jj < 16: return s.adv_kv(which), s.dma_kv(which, r, jj, srd)
                return None
            for j in range(16):
                sbA = slot_base[3 * j + 1]
                needA = [("K", r, j + 1)] if j < 15 else ([("Q", r + 1, 0)] if not last else [])
                if s.merged and last and j == 2: needA = needA + [("O", r - 1)]
                sc.put(sbA + 3, sync(needs=needA))
                if j < 15:
                    for t in range(8): sc.put(sbA + 4 + t, s.rd_K(j + 1, t))
                DA = []
                if RING == 5 and j == 0:
                    DA += s.adv_kv("K") + s.dma_kv("K", r, 4, srdK) + s.adv_kv("V") + s.dma_kv("V", r, 4, srdV)
                if j + RING < 16: DA += s.adv_kv("V") + s.dma_kv("V", r, j + RING, srdV)
                elif not last:
                    if RING == 4 and (j + RING - 16) < 2:
                        DA += s.adv_kv("V") + s.dma_kv("V", r + 1, j + RING - 16, nV)
                if not last and j == 14: DA += s.adv_q() + s.dma_q(r + 1, 0, nW)
                if not last and j == 15: DA += s.adv_q() + s.dma_q(r + 1, 2, nW)
                seq(sbA + 4, DA, s.astep if len(DA) <= 8 else 2)
                if j < 15:
                    sbB = slot_base[3 * j + 2]
                    sc.put(sbB + 2, sync(needs=[("V", r, j + 1)]))
                    DB = []
                    jj = j + 1 + RING
                    if jj < 16: DB += s.adv_kv("K") + s.dma_kv("K", r, jj, srdK)
                    elif not last and RING == 4 and (jj - 16) < 2:
                        DB += s.adv_kv("K") + s.dma_kv("K", r + 1, jj - 16, nK)
                    if j == 0:
                        DB = s.adv_kv("K") + s.dma_kv("K", r, RING, srdK) + DB
                    if not last and j == 14: seq(sbB + 6, s.adv_q() + s.dma_q(r + 1, 1, nW), 2)
                    seq(sbB + 3, DB, s.astep if len(DB) <= 8 else 2)
                sb0 = slot_base[3 * j]; off = 8 if j > 0 else 0
                for u in range(2):
                    for dt in range(4):
                        rr = s.rd_V(j, u, dt); p = sb0 + off + 4 * u + dt
                        sc.put(p, rr[0]); sc.put(p, rr[1])
                if j == 15 and not last:
                    for t in range(8):
                        rr = s.rd_A(0, t); sc.put(sbA + 8 + 2 * t, rr[0]); sc.put(sbA + 9 + 2 * t, rr[1])
                    for q in range(3): sc.put(sbA + 4 + q, s.rd_B(0, q))
            if s.wo_pf and last:
                sc.put(slot_base[37] + 12, vload("buffer_load_dword", s.vDum, s.vPf, s.srdPf, 0, 0, tag=("PF",)))
            if s.merged and last:
                sc.put(slot_base[4] + 8, [valu("v_mov_b32", s.vOne, 1)]); sc.put(slot_base[4] + 9, [valu("v_lshlrev_b32", s.vCnt, 16, s.vLane)])
                seq(slot_base[7] + 5, s.signal(0), 1)
                L = s.t_vector_setup()
                for i, x in enumerate(L): sc.put(slot_base[12] + (i * 16 * 12) // len(L), x)
                seq(slot_base[35] + 10, s.poll_issue(0))
                for x in s.poll_check(0): sc.put(slot_base[40] + 12, x)
                sbA = slot_base[46]
                p = seq(sbA + 4, s.t_issue_w(0), 2)
                seq(p, s.t_issue_b(0), 2)
            for n in range(48):
                sb = slot_base[n]; Q = n % 3; j = n // 3
                nm = (slot_base[n + 1] if n + 1 < 48 else pv47) - sb
                Sg = s.Sreg(Q)
                E = [valu("v_exp_f32", Sg.sub(i), Sg.sub(i)) for i in range(16)]
                seqv = [E[0]]
                for i in range(16):
                    if i + 1 < 16: seqv.append(E[i + 1])
                    seqv.append(valu("v_mov_b32", s.vL[Q], Sg.sub(i)) if (j == 0 and i == 0) else valu("v_add_f32", s.vL[Q], s.vL[Q], Sg.sub(i)))
                    if i % 2 == 1: seqv.append(valu("v_cvt_pk_bf16_f32", Sg.sub(i // 2), Sg.sub(i - 1), Sg.sub(i)))
                lo = sb + 1; hi = sb + nm - 1
                if n == 0: lo = sb + 4
                if n == 47: lo = slot_base[46] + 12
                sc.chain(seqv, lo, hi)
            LF = s.l_final()
            for i, x in enumerate(LF): sc.put(pv47 + 1 + (i * 6) // len(LF), x)
        body = sc.linear()
        E = []
        srdO = s.srdO if (R - 1) % 2 == 0 else s.srdOn
        D = []; n = 0
        for Q in range(3):
            for dt in range(4):
                for u in range(2):
                    base = 208 if s.merged else 64
                    D.append(s.drain_item(Q, dt, u, V(base + 8 * (n % 4), 8), srdO, R - 1)); n += 1
        if not s.merged:
            for d in D: E += d
        else:
            X = s.t_issue_w(1) + s.t_issue_b(1) + s.t_issue_w(2) + s.t_issue_b(2)
            flat = [x for d in D for x in d]
            k = 0; per = 9
            for i, x in enumerate(flat):
                E.append(x)
                if i % per == per - 1 and k < len(X):
                    while k < len(X) and X[k].k == "s": E.append(X[k]); k += 1
                    if k < len(X): E.append(X[k]); k += 1
            E += X[k:]
            E.append(sync(needs=[("W", 0)], lgkm0=False, barrier=False))
            for t in range(8): E += s.t_areads(0, t)
            ts = Sched(); NK = 32; dep = s.tdepth
            for ks in range(NK):
                for t in range(8):
                    for q in range(6):
                        ts.add_bb(mfma16(s.t_acc(t, q), s.t_A(t), s.t_B(ks, q), s.t_acc(t, q) if ks else 0))
            def tseq(lo, L, step):
                p = lo; lastv = -10**9
                for x in L:
                    if x.k in ("dma", "vl", "vs"):
                        p = max(p, lastv + step); lastv = p
                    ts.put(min(p, ts.n() - 1), x); p += 1
            for ks in range(NK):
                b = ks * 48
                if ks + dep < NK: tseq(b + 1, s.t_issue_w(ks + dep) + s.t_issue_b(ks + dep), 3)
                if ks + 1 < NK:
                    ts.put(b + 5, sync(needs=[("W", ks + 1)], lgkm0=False, barrier=False))
                    for t in range(8):
                        rr = s.t_areads(ks + 1, t); p = b + 6 * t + 5
                        ts.put(p, rr[0]); ts.put(min(p + 1, ts.n() - 1), rr[1])
                if ks == 3:
                    ts.put(b + 44, sync(needs=[("O", R - 1)], lgkm0=False, barrier=True))
                    for x in s.signal(1): ts.put(b + 45, x)
                if ks == 9:
                    for x in s.poll_issue(1): ts.put(b + 46, x)
                if ks == 16 - dep - 1:
                    for x in s.poll_check(1): ts.put(b + 46, x)
            E += ts.linear() + s.t_epilogue()
        prog = P + body + E
        def tagk(x): return x.tag[0] if x.tag else None
        if "nokv" in s.exp: prog = [x for x in prog if not (x.k == "dma" and tagk(x) in ("K", "V"))]
        if "noq" in s.exp: prog = [x for x in prog if not (x.k == "dma" and tagk(x) == "Q")]
        if "nods" in s.exp: prog = [x for x in prog if x.k != "ds"]
        if "nost" in s.exp: prog = [x for x in prog if x.k != "vs"]
        s.check_order(prog)
        prog = insert_waits(prog)
        if "tl" in s.exp: prog = timeline(prog, "cyc" in s.exp)
        rep = []
        prog = fix_hazards(prog, report=rep)
        s.prog = prog; s.rep = rep
        name = s.name
        ool = ("\n" + "\n".join(i.t if i.k == "label" else "    " + i.t for i in s.outofline)) if s.merged else ""
        txt = f".globl {name}\n.p2align 8\n.type {name},@function\n{name}:\n" + emit(prog) + f"\nL_{name}_end:\n    s_endpgm" + ool + "\n"
        kd = f""".amdhsa_kernel {name}
  .amdhsa_next_free_vgpr 512
  .amdhsa_next_free_sgpr 102
  .amdhsa_accum_offset 256
  .amdhsa_group_segment_fixed_size 0
  .amdhsa_kernarg_size 104
  .amdhsa_user_sgpr_count 2
  .amdhsa_user_sgpr_kernarg_segment_ptr 1
  .amdhsa_system_sgpr_workgroup_id_x 1
.end_amdhsa_kernel
"""
        return txt, kd
    def check_order(s, prog):
        regs = {"K": [s.sKo.n], "V": [s.sVo.n], "Q": [s.sCw.n, s.sCx.n]}
        wr = {n: 0 for v in regs.values() for n in v}
        started = False; m0owner = None; owner_of = {}
        for x in prog:
            if x.k == "s":
                for w in x.w:
                    if w[0] == "s" and w[1] in wr and (x.t.startswith("s_add_u32") or x.t.startswith("s_and_b32")) and ("s_lshl" not in x.t): wr[w[1]] += 1
                if M0 in x.w: m0owner = x
            if x.k == "dma" and x.tag and x.tag[0] in regs:
                k = x.tag[0]; idx = x.tag[1] * 16 + x.tag[2]
                for n in regs[k]:
                    assert wr[n] == 2 * (idx + 1), ("offset/transfer mismatch", x.tag, n, wr[n])
                key = (x.tag, x.t.split(",")[1].strip() if k == "Q" else "")
                if key in owner_of: assert owner_of[key] is m0owner, ("M0 clobbered", x.tag)
                owner_of[key] = m0owner

def timeline(prog, cyc):
    op = "s_memtime" if cyc else "s_memrealtime"
    out = []; n = 0
    A_, B_ = 100, 101
    def wl(n): return Ins(f"v_writelane_b32 v{[0,43][n // 64]}, s100, {n % 64}", "v", w=[V([0,43][n // 64])])
    for x in prog:
        out.append(x)
        if x.k == "bar":
            if n > 0: out.append(wl(n - 1))
            out.append(Ins(f"{op} s[100:101]", "s", w=[S(100, 2)])); n += 1
    out.append(Ins("s_waitcnt lgkmcnt(0) vmcnt(0)", "wait")); out.append(wl(n - 1))
    out.append(Ins(f"{op} s[100:101]", "s")); out.append(Ins("s_waitcnt lgkmcnt(0)", "wait")); out.append(wl(n)); n += 1
    for t in ["s_add_u32 s16, s12, 281000000", "s_addc_u32 s17, s13, 0", "s_mov_b32 s18, 1048576", "s_mov_b32 s19, 0x20000",
              "s_lshl_b32 s58, s2, 2", "s_add_u32 s58, s58, s3", "s_lshl_b32 s58, s58, 9"]:
        out.append(Ins(t, "s"))
    out.append(Ins("v_lshlrev_b32 v2, 2, v1", "v")); out.append(Ins("s_nop 4", "nop"))
    out.append(Ins("buffer_store_dword v0, v2, s[16:19], s58 offen", "raw"))
    out.append(Ins("buffer_store_dword v43, v2, s[16:19], s58 offen offset:256", "raw"))
    return out
if __name__ == "__main__":
    for ring in (4, 5):
        k = K1(ring=ring); t, kd = k.gen()
        from collections import Counter
        print(ring, len(t.splitlines()), "lines; hazard pads:", len(k.rep), Counter((n, x.split()[0]) for n, x in k.rep).most_common(8))
```

```python
import sys
sys.path.insert(0, "gen")
from build import build
from k1gen import K1, LDS_BYTES
from k2gen import gen_k2
def make(path, k1kw={}, k2kw={}, which="both"):
    parts = []; launches = []
    if which in ("both", "k1"):
        k = K1(**k1kw); t, kd = k.gen(); parts.append((t, kd)); launches.append((k.name, 256, 256, LDS_BYTES))
    if which in ("both", "k2"):
        t, kd, rep = gen_k2(**k2kw); parts.append((t, kd)); launches.append(("oproj_kernel", 256, 256, 163840))
    open(path, "w").write(build(parts, launches))
KNAME = "concat_heads__mha_block_cached__gqa_block_cached__near_ridge_kernel"
def make_merged(path, aslist=False, **kw):
    k = K1(name=KNAME, merged=True, **kw); t, kd = k.gen()
    src = build([(t, kd)], [(KNAME, 256, 256, LDS_BYTES)])
    if not aslist: src = src.replace(f"; @launch kernel={KNAME} grid", "; @launch grid")
    open(path, "w").write(src); return k
if __name__ == "__main__":
    make("full.s")
    make_merged("merged.s", aslist=True)
    make_merged("merged_final.s")
```

```python
import sys; sys.path.insert(0,'gen')
from mkall import make
for n in sys.argv[1:]:
    parts=n.split("+")
    kw={}
    ex=[]
    for p in parts:
        if p=="base": continue
        if "=" in p:
            a,b=p.split("="); kw[a]=int(b) if b.lstrip("-").isdigit() else b.replace("_"," ")
        else: ex.append(p)
    kw["exp"]=tuple(ex)+("tl",)
    if kw.pop("merged",0):
        from mkall import make_merged
        make_merged(f"tl_{n}.s", aslist=True, **kw)
    else:
        make(f"tl_{n}.s", k1kw=kw, which="k1")
```
